```python
import torch

def _softmax(x, axis=-1):
    return torch.softmax(x, dim=axis)
def _gelu(x):
    return torch.nn.functional.gelu(x, approximate="tanh")
def _silu(x):
    return torch.nn.functional.silu(x)
def _sigmoid(x):
    return torch.sigmoid(x)
def _layernorm(x, axis=-1, eps=1e-5):
    m = x.mean(dim=axis, keepdim=True)
    v = x.var(dim=axis, keepdim=True, unbiased=False)
    return (x - m) / torch.sqrt(v + eps)
def _scatter_add(tgt, idx, src, axis=0):
    return tgt.clone().index_add_(axis, idx, src)
def _segment_sum(src, seg, n):
    out = torch.zeros((n,) + src.shape[1:], dtype=src.dtype)
    return out.index_add_(0, seg, src)
def _pad(x, pw):
    flat = tuple(v for pair in reversed(pw) for v in pair)
    return torch.nn.functional.pad(x, flat)

kernel_name = 'parallel_sum__compressed_kv_cla__glu_gated_glu__decode'

def setup_inputs():

    _w = (lambda a: (lambda t: t.to(torch.bfloat16) if t.is_floating_point() else t)(torch.as_tensor(a)))
    def _A_setup():
        B, H, Sq, Sk, D, M = 2, 32, 1, 4096, 128, 512
        Dc = 4 * D
        return {
            "x": _w((lambda *s: torch.randn(*s, dtype=torch.bfloat16) * 0.05)(B, Sq, M)),
            "c_kv": _w((lambda *s: torch.randn(*s, dtype=torch.bfloat16) * 1.6)(B, Sk, Dc)),
            "w_q": _w((lambda *s: torch.randn(*s, dtype=torch.bfloat16) * 1.6)(M, H, D) * (M ** -0.5)),
            "w_uk": _w((lambda *s: torch.randn(*s, dtype=torch.bfloat16) * 1.6)(Dc, H, D) * (Dc ** -0.5)),
            "w_uv": _w((lambda *s: torch.randn(*s, dtype=torch.bfloat16) * 1.6)(Dc, H, D) * (Dc ** -0.5)),
            "w_o": _w((lambda *s: torch.randn(*s, dtype=torch.bfloat16) * 1.6)(H, D, M) * ((H * D) ** -0.5)),
        }
    _A_in = _A_setup()

    def _B_setup():
        B, S, D, F = 2, 1, 512, 1376
        return {
            "x": _w((lambda *s: torch.randn(*s, dtype=torch.bfloat16) * 0.05)(B, S, D)),
            "w_gate": _w((lambda *s: torch.randn(*s, dtype=torch.bfloat16) * 0.1)(D, F)),
            "w_up": _w((lambda *s: torch.randn(*s, dtype=torch.bfloat16) * 0.05)(D, F)),
            "w_down": _w((lambda *s: torch.randn(*s, dtype=torch.bfloat16) * 0.05)(F, D)),
        }
    _B_in = _B_setup()

    return {
        "A_x": _A_in["x"],
        "A_c_kv": _A_in["c_kv"],
        "A_w_q": _A_in["w_q"],
        "A_w_uk": _A_in["w_uk"],
        "A_w_uv": _A_in["w_uv"],
        "A_w_o": _A_in["w_o"],
        "B_x": _B_in["x"],
        "B_w_gate": _B_in["w_gate"],
        "B_w_up": _B_in["w_up"],
        "B_w_down": _B_in["w_down"],
    }

def reference(A_x, A_c_kv, A_w_q, A_w_uk, A_w_uv, A_w_o, B_x, B_w_gate, B_w_up, B_w_down):
    def _A_ref(x, c_kv, w_q, w_uk, w_uv, w_o):
        B, Sq, M = x.shape[0], x.shape[1], x.shape[2]
        Sk = c_kv.shape[1]
        H, D = w_q.shape[1], w_q.shape[2]
        q = torch.einsum("bqm,mhd->bhqd", x, w_q)
        k = torch.einsum("bkc,chd->bhkd", c_kv, w_uk)
        v = torch.einsum("bkc,chd->bhkd", c_kv, w_uv)
        scores = torch.einsum("bhqd,bhkd->bhqk", q, k) * (D ** -0.5)
        off = Sk - Sq
        qi = torch.arange(Sq)[:, None]
        kj = torch.arange(Sk)[None, :]
        cmask = kj <= (qi + off)
        scores = torch.where(cmask[None, None], scores, -1e9)
        p = _softmax(scores, axis=-1)
        ctx = torch.einsum("bhqk,bhkd->bhqd", p, v)
        return torch.einsum("bhqd,hdm->bqm", ctx, w_o)

    def _B_ref(x, w_gate, w_up, w_down):
        g = torch.einsum("bsd,df->bsf", x, w_gate)
        u = torch.einsum("bsd,df->bsf", x, w_up)
        h = _sigmoid(g) * u
        return torch.einsum("bsf,fd->bsd", h, w_down)

    x = A_x
    xn = _layernorm(x, axis=-1)
    return x + _A_ref(xn, A_c_kv, A_w_q, A_w_uk, A_w_uv, A_w_o) + _B_ref(xn, B_w_gate, B_w_up, B_w_down)
```

```python
import re

TRANS = ("v_exp_f32", "v_log_f32", "v_rcp_f32", "v_rsq_f32", "v_sqrt_f32", "v_sin_f32", "v_cos_f32")

def regs_of(tok):
    tok = tok.strip()
    neg = tok.lstrip("-")
    m = re.fullmatch(r"(?:abs\()?v(\d+)\)?", neg)
    if m: return {int(m.group(1))}, set()
    m = re.fullmatch(r"v\[(\d+):(\d+)\]", neg)
    if m: return set(range(int(m.group(1)), int(m.group(2)) + 1)), set()
    m = re.fullmatch(r"s(\d+)", neg)
    if m: return set(), {int(m.group(1))}
    m = re.fullmatch(r"s\[(\d+):(\d+)\]", neg)
    if m: return set(), set(range(int(m.group(1)), int(m.group(2)) + 1))
    if neg in ("vcc", "exec", "m0"): return set(), {neg}
    return set(), set()

class Ins:
    pass

def parse(text):
    t = text.split(";")[0].strip()
    p = t.split(None, 1)
    mn = p[0]
    rest = p[1] if len(p) > 1 else ""
    ops = []; depth = 0; cur = ""
    for ch in rest:
        if ch == "[": depth += 1
        if ch == "]": depth -= 1
        if ch == "," and depth == 0:
            ops.append(cur.strip()); cur = ""
        else: cur += ch
    if cur.strip(): ops.append(cur.strip())
    mods = ""
    if ops:
        q = ops[-1].split(None, 1)
        ops[-1] = q[0]
        mods = q[1] if len(q) > 1 else ""
    I = Ins()
    I.mn = mn; I.ops = ops; I.mods = mods
    I.wv = set(); I.rv = set(); I.ws = set(); I.rs = set()
    I.kind = "other"; I.states = 1
    I.dpp = False; I.trans = False; I.perm = False; I.rdlane = False; I.dot = False
    I.mfma_c = set(); I.mfma_ab = set(); I.widestore = set(); I.ldsdma = False
    def rd(tok):
        v, s = regs_of(tok); I.rv |= v; I.rs |= s
    def wr(tok):
        v, s = regs_of(tok); I.wv |= v; I.ws |= s
    if mn == "s_nop":
        I.states = int(ops[0], 0) + 1; I.kind = "salu"
    elif mn.startswith("v_mfma"):
        I.kind = "mfma"; wr(ops[0]); rd(ops[1]); rd(ops[2]); rd(ops[3])
        I.mfma_ab = regs_of(ops[1])[0] | regs_of(ops[2])[0]; I.mfma_c = regs_of(ops[3])[0]
        assert "16x16x32" in mn
    elif mn.startswith("v_"):
        I.kind = "valu"
        if mn.startswith("v_permlane"):
            I.perm = True
            for o in ops: rd(o); wr(o)
        else:
            wr(ops[0])
            for o in ops[1:]: rd(o)
            if mn.startswith("v_fmac") or mn.startswith("v_dot2c"): rd(ops[0])
        if "dpp" in mn or "row_" in mods or "quad_perm" in mods: I.dpp = True
        if mn.startswith(TRANS): I.trans = True
        if mn.startswith("v_readfirstlane") or mn.startswith("v_readlane"): I.rdlane = True
        if mn.startswith("v_dot"): I.dot = True
    elif mn.startswith("ds_"):
        I.kind = "ds"
        if mn.startswith("ds_read"):
            wr(ops[0]); rd(ops[1])
        else:
            for o in ops: rd(o)
    elif mn.startswith("buffer_") or mn.startswith("global_"):
        I.kind = "vmem"
        if "lds" in mods.split() or "_lds_" in mn:
            I.ldsdma = True
            for o in ops: rd(o)
        elif "load" in mn:
            wr(ops[0])
            for o in ops[1:]: rd(o)
        else:
            for o in ops: rd(o)
            if "x4" in mn or "x3" in mn:
                d = ops[0] if mn.startswith("buffer_") else ops[1]
                I.widestore = regs_of(d)[0]
    elif mn.startswith("s_"):
        I.kind = "salu"
        if ops and not mn.startswith(("s_cmp", "s_cbranch", "s_branch", "s_waitcnt", "s_barrier", "s_endpgm", "s_sleep", "s_setprio")):
            wr(ops[0])
            for o in ops[1:]: rd(o)
    return I

def need(P, C):
    n = 0
    if P.kind == "valu":
        if C.kind == "mfma" and (P.wv & C.rv): n = max(n, 2)
        if C.kind == "valu":
            if C.dpp and (P.wv & C.rv): n = max(n, 2)
            if C.perm and (P.wv & C.rv): n = max(n, 2)
            if C.rdlane and (P.wv & C.rv): n = max(n, 1)
            if P.ws & C.rs: n = max(n, 4 if C.rdlane else 2)
            if P.trans and not C.trans and (P.wv & C.rv): n = max(n, 1)
        if P.dot and C.kind in ("valu", "mfma", "vmem", "ds") and (P.wv & (C.rv | C.wv)):
            same = C.kind == "valu" and C.mn == P.mn
            srcc_only = same and not (P.wv & (regs_of(C.ops[1])[0] | regs_of(C.ops[2])[0]))
            if not srcc_only: n = max(n, 3)
        if C.kind == "vmem" and (P.ws & C.rs): n = max(n, 5)
        if C.kind == "salu" and (P.ws & C.rs): n = max(n, 1)
    if P.kind == "mfma":
        if C.kind == "mfma":
            if P.wv & C.mfma_ab: n = max(n, 8)
            if P.wv & C.mfma_c and P.wv != C.mfma_c: n = max(n, 6)
            if (P.wv & C.wv) and P.wv != C.mfma_c: n = max(n, 8)
        elif C.kind in ("valu", "vmem", "ds"):
            if P.wv & (C.rv | C.wv): n = max(n, 8)
            if C.kind == "valu" and (P.mfma_c & C.wv): n = max(n, 3)
    if P.kind == "salu" and "m0" in P.ws and C.ldsdma: n = max(n, 1)
    if P.widestore:
        if C.kind in ("valu", "mfma") and (P.widestore & C.wv): n = max(n, 2)
        elif P.widestore & C.wv: n = max(n, 1)
    return n

class Asm:
    def __init__(self):
        self.out = []
        self.hists = [[]]
        self.vms = [[]]
        self.snap = {}
        self.dead = False
        self.nlabel = 0
        self.count = 0
    def raw(self, text):
        self.out.append(text)
    def c(self, text):
        self.out.append("    ; " + text)
    def I(self, text, tag=None):
        C = parse(text)
        pad = 0
        for h in self.hists:
            gap = 0
            for P in reversed(h):
                r = need(P, C)
                if r > gap: pad = max(pad, r - gap)
                gap += P.states
                if gap >= 12: break
        if pad:
            self._emit("s_nop %d" % (pad - 1), parse("s_nop %d" % (pad - 1)))
        self._emit(text, C)
        if C.kind == "vmem":
            for l in self.vms: l.append(tag)
        if C.mn.startswith("s_cbranch") or C.mn == "s_branch":
            L = C.ops[0]
            self.snap.setdefault(L, []).append(([list(h) for h in self.hists], [list(l) for l in self.vms]))
            if C.mn == "s_branch": self.dead = True
        if C.mn == "s_endpgm": self.dead = True
    def _emit(self, text, C):
        self.out.append("    " + text)
        self.count += 1
        for h in self.hists:
            h.append(C)
            if len(h) > 14: del h[0]
    def label(self, L):
        hs = [] if self.dead else self.hists
        vs = [] if self.dead else self.vms
        for (h, v) in self.snap.get(L, []):
            hs = hs + [list(x) for x in h]; vs = vs + [list(x) for x in v]
        if not hs: hs = [[]]
        if not vs: vs = [[]]
        u = []
        for v in vs:
            if v not in u: u.append(v)
        self.hists = hs[:16]; self.vms = u; self.dead = False
        self.out.append(L + ":")
    def newlabel(self, base="L"):
        self.nlabel += 1
        return "%s_%d" % (base, self.nlabel)
    def vm_n(self, *tags):
        n = None
        for l in self.vms:
            idx = [k for k, t in enumerate(l) if t in tags]
            if idx:
                c = len(l) - 1 - idx[-1]
                n = c if n is None else min(n, c)
        return n
    def wait_vm(self, *tags, lgkm=None):
        n = self.vm_n(*tags)
        parts = []
        if n is not None:
            n = min(n, 63)
            parts.append("vmcnt(%d)" % n)
            for l in self.vms:
                if len(l) > n: del l[:len(l) - n]
        if lgkm is not None: parts.append("lgkmcnt(%d)" % lgkm)
        if parts: self.I("s_waitcnt " + " ".join(parts))
    def wait_vm0(self):
        self.I("s_waitcnt vmcnt(0)")
        self.vms = [[]]
    def lgkm(self, n=0):
        self.I("s_waitcnt lgkmcnt(%d)" % n)
    def text(self):
        return "\n".join(self.out) + "\n"
```

```python
import sys, os
from asmlib import Asm
KN = "parallel_sum__compressed_kv_cla__glu_gated_glu__decode_kernel"
STAMP = int(os.environ.get("STAMP", "0"))
SPIN_MAX = 20000

WS_H0 = 0x10000
WS_H1 = WS_H0 + 0x40000
WS_H25 = WS_H1 + 0x20000
WS_HF = WS_H25 + 0x40000
WS_H3 = WS_HF + 0x40000
WS_H2 = 0x200000
WS_STAMP = 0x800000
WS_SIZE = 0x10000000
CKV = 0
R1 = 135168
Q_ = R1; P_ = R1 + 8704; MX = R1 + 11008; OW = R1 + 11520; ST2 = R1 + 12800; HB = R1 + 12864
R2 = R1 + 16896
ST = R2 + 4608
LDS_SIZE = ST + 64
WUVI = 0; WOI = 16896; GUI = 33792; WDI = 50688
X, CK, WQ, WUK, WUV, WO, GA, UP, DN, OUT, WS = ["s[%d:%d]" % (4 + 4*k, 7 + 4*k) for k in range(11)]
sW = "s3"; sX8 = "s48"; sI = "s49"; sJ = "s50"; sH = "s51"; sT = "s52"; sT2 = "s53"; sTT = "s[52:53]"
sA = "s54"; sB = "s55"; sG = "s56"; sOnes = "s57"; sCKoff = "s58"; sCKm0 = "s59"; sCKk = "s60"; sHG = "s61"
sTile = "s62"; sFS = "s63"; sSpin = "s64"; sC = "s65"; sM = "s[66:67]"; sHi = "s[68:69]"; sD = "s70"; sE = "s71"
sGrp = "s72"
STAMP0 = 74
vL = "v1"; vN = "v2"; vS = "v3"; vL16 = "v4"; vTr = "v5"
vF16 = "v6"; vA = "v7"; vB = "v8"; vPubN = "v9"; vPubB = "v10"; vQPw = "v11"; vQPr = "v12"; vC = "v13"; vD = "v14"
vE = "v15"; vF = "v16"; vG = "v17"; vNM = "v18"; vRS = "v19"
def V(a, n=1): return "v%d" % a if n == 1 else "v[%d:%d]" % (a, a + n - 1)
XF = 20
LATE = 28
GR = 56
TMP = 60
QK = 64; PV = 128; QB = 192; ACC = 224

k = Asm()
I = k.I
nstamp = [0]
SKIP = os.environ.get("SKIP", "kernarg,B4a,st2ack").split(",")
names = []
def stamp(name):
    if not STAMP or name in SKIP: return
    n = nstamp[0]; nstamp[0] += 1
    names.append(name)
    assert n < 14
    k.c("stamp %d %s" % (n, name))
    I("s_memrealtime s[%d:%d]" % (STAMP0 + 2*n, STAMP0 + 2*n + 1))

def set_exec(mask):
    if mask == -1: I("s_mov_b64 exec, -1")
    else:
        I("s_mov_b32 exec_lo, 0x%08x" % (mask & 0xffffffff)); I("s_mov_b32 exec_hi, 0x%08x" % (mask >> 32))

def mfma(d, a, b, c):
    I("v_mfma_f32_16x16x32_bf16 %s, %s, %s, %s" % (V(d, 4), V(a, 4), V(b, 4), V(c, 4) if isinstance(c, int) else c))

DPP = " row_mask:0xf bank_mask:0xf"
def ckv_group():
    I("s_add_u32 %s, %s, %s" % (sA, sHG, sCKk))
    I("s_and_b32 %s, %s, 3" % (sA, sA))
    I("s_mul_i32 %s, %s, %d" % (sB, sA, 4*1056))
    I("s_add_u32 m0, %s, %s" % (sB, sCKm0))
    I("s_lshl_b32 %s, %s, 12" % (sA, sA))
    I("s_add_u32 %s, %s, %s" % (sA, sA, sCKoff))
    for r in range(4):
        I("buffer_load_dwordx4 %s, %s, %s offen offset:%d nt lds" % (vL16, CK, sA, 1024*r), tag="ckv")
        if r < 3: I("s_add_u32 m0, m0, 32")
    I("s_add_u32 %s, %s, 1" % (sCKk, sCKk))

def gather(name, loads, check, after_first=None):
    Lr = k.newlabel("L_retry_" + name); Ld = k.newlabel("L_done_" + name)
    loads(name)
    if after_first: after_first()
    k.wait_vm(name)
    check()
    I("s_cbranch_scc0 %s" % Ld)
    I("s_mov_b32 %s, 0" % sSpin)
    k.label(Lr)
    I("s_add_u32 %s, %s, 1" % (sSpin, sSpin))
    I("s_cmp_gt_u32 %s, %d" % (sSpin, SPIN_MAX))
    I("s_cbranch_scc1 L_END")
    loads(name)
    k.wait_vm0()
    check()
    I("s_cbranch_scc1 %s" % Lr)
    k.label(Ld)

def check64(regs):
    def f():
        for n, r in enumerate(regs):
            I("v_cmp_ne_u64 %s, %s, %s" % ("vcc" if n == 0 else sM, sTT, V(r, 2)))
            if n > 0: I("s_or_b64 vcc, vcc, %s" % sM)
        if len(regs) == 1: I("s_cmp_lg_u64 vcc, 0")
    return f

hdr = open("cdna_kernels/%s.s.ref" % KN[:-7]).read().split("\n")
for ln in hdr:
    if ln.startswith("; @launch"): break
    k.raw(ln)
k.raw("; @launch grid=(256,1,1) block=(512,1,1) lds=%d" % LDS_SIZE)
k.raw('.amdgcn_target "amdgcn-amd-amdhsa--gfx950"\n.text\n.globl %s\n.p2align 12\n.p2align 8\n.type %s,@function\n%s:' % (KN, KN, KN))

stamp("entry")
I("s_cmp_ge_u32 s2, 256")
I("s_cbranch_scc1 L_END")
for srd, off in ((4, 0), (12, 16), (16, 24), (8, 8), (44, 96)):
    I("s_load_dwordx2 s[%d:%d], s[0:1], %d" % (srd, srd + 1, off))
I("v_lshrrev_b32 %s, 6, v0" % vA)
I("v_and_b32 %s, 63, v0" % vL)
I("v_readfirstlane_b32 %s, %s" % (sW, vA))
I("v_and_b32 %s, 15, v0" % vN)
I("v_lshrrev_b32 %s, 4, %s" % (vS, vL))
I("v_lshlrev_b32 %s, 4, %s" % (vL16, vL))
I("s_and_b32 %s, s2, 7" % sX8)
I("s_lshr_b32 %s, s2, 3" % sI)
I("s_and_b32 %s, %s, 7" % (sJ, sI))
I("s_lshr_b32 %s, %s, 3" % (sG, sI))
I("s_lshl_b32 %s, %s, 2" % (sH, sX8))
I("s_add_u32 %s, %s, %s" % (sH, sH, sG))
sizes = {4: 2048, 8: 8 << 20, 12: 4 << 20, 16: 4 << 20, 20: 4 << 20, 24: 4 << 20, 28: 512*1376*2, 32: 512*1376*2, 36: 512*1376*2, 40: 2048, 44: WS_SIZE}
for srd in (4, 12, 16, 8, 44):
    I("s_mov_b32 s%d, 0x%x" % (srd + 2, sizes[srd])); I("s_mov_b32 s%d, 0x20000" % (srd + 3))
I("s_mov_b32 %s, 0x3f803f80" % sOnes)
I("v_and_b32 %s, 1, %s" % (vA, vS))
I("v_lshlrev_b32 %s, 15, %s" % (vA, vA))
I("v_lshrrev_b32 %s, 5, %s" % (vB, vL))
I("v_lshlrev_b32 %s, 18, %s" % (vB, vB))
I("v_lshlrev_b32 %s, 4, %s" % (vF16, vN))
I("v_add3_u32 %s, %s, %s, %s" % (vF16, vF16, vA, vB))
I("v_lshlrev_b32 %s, 4, %s" % (vE, vS))
I("v_lshl_add_u32 %s, %s, 10, %s" % (vC, vN, vE))
I("v_lshl_add_u32 %s, %s, 13, %s" % (vD, vN, vE))
for r in range(8): I("v_mov_b32 %s, %s" % (V(XF + r), sOnes))
I("s_lshr_b32 %s, %s, 1" % (sA, sW)); I("s_lshl_b32 %s, %s, 3" % (sA, sA))
I("s_and_b32 %s, %s, 1" % (sB, sW)); I("s_lshl_b32 %s, %s, 1" % (sC, sB))
I("s_add_u32 %s, %s, %s" % (sE, sA, sC))
I("s_lshl_b32 %s, %s, 6" % (sA, sJ)); I("s_add_u32 %s, %s, %s" % (sA, sA, sE))
I("s_lshl_b32 %s, %s, 13" % (sA, sA)); I("s_lshl_b32 %s, %s, 8" % (sC, sH))
I("s_add_u32 %s, %s, %s" % (sD, sA, sC))
I("s_lshl_b32 %s, %s, 10" % (sB, sB))
I("s_lshl_b32 %s, %s, 7" % (sA, sJ))
I("s_mul_i32 %s, %s, 2112" % (sC, sW))
I("s_add_u32 m0, %s, %d" % (sC, R1))
I("s_add_u32 %s, %s, 8192" % (sC, sD))
k.lgkm(0)
stamp("kernarg")
I("buffer_load_dwordx4 %s, %s, %s, %s offen" % (V(ACC, 4), vL16, X, sB), tag="xs")
set_exec(0x0003000300030003)
I("buffer_load_dwordx4 %s, %s, %s, %s offen" % (V(XF, 4), vC, X, sA), tag="xf")
I("buffer_load_dwordx4 %s, %s, %s, %s offen offset:64" % (V(XF + 4, 4), vC, X, sA), tag="xf")
set_exec(-1)
I("buffer_load_dwordx4 %s, %s, %s offen nt lds" % (vF16, WQ, sD), tag="wq")
I("s_add_u32 m0, m0, 1056")
I("buffer_load_dwordx4 %s, %s, %s offen nt lds" % (vF16, WQ, sC), tag="wq")
I("s_load_dword %s, s[44:45], 0" % sT)
for srd, off in ((20, 32), (24, 40), (28, 56), (32, 64), (36, 72), (40, 80)):
    I("s_load_dwordx2 s[%d:%d], s[0:1], %d" % (srd, srd + 1, off))
I("s_and_b32 %s, %s, 3" % (sHG, sI))
I("s_lshr_b32 %s, %s, 2" % (sA, sI)); I("s_lshl_b32 %s, %s, 3" % (sTile, sX8)); I("s_add_u32 %s, %s, %s" % (sTile, sTile, sA))
I("s_lshl_b32 %s, %s, 17" % (sCKoff, sTile)); I("s_lshl_b32 %s, %s, 14" % (sA, sW)); I("s_add_u32 %s, %s, %s" % (sCKoff, sCKoff, sA))
I("s_mul_i32 %s, %s, %d" % (sCKm0, sW, 16*1056))
I("s_mov_b32 %s, 0" % sCKk)
I("s_cmp_ge_u32 %s, 4" % sW)
I("s_cbranch_scc1 L_p0_hi")
I("s_lshl_b32 %s, %s, 6" % (sA, sJ)); I("s_lshl_b32 %s, %s, 4" % (sB, sW)); I("s_add_u32 %s, %s, %s" % (sA, sA, sB))
I("s_lshl_b32 %s, %s, 13" % (sA, sA)); I("s_lshl_b32 %s, %s, 8" % (sB, sH)); I("s_add_u32 %s, %s, %s" % (sA, sA, sB))
for ks in range(4):
    I("buffer_load_dwordx4 %s, %s, %s, %s offen offset:%d nt" % (V(PV + 4*ks, 4), vD, WUK, sA, 64*ks), tag="wuk")
I("s_branch L_p0_end")
k.label("L_p0_hi")
ckv_group()
k.label("L_p0_end")
for srd in (20, 24, 28, 32, 36, 40):
    I("s_mov_b32 s%d, 0x%x" % (srd + 2, sizes[srd])); I("s_mov_b32 s%d, 0x20000" % (srd + 3))
I("v_lshrrev_b32 %s, 2, %s" % (vA, vL))
I("v_mul_u32_u24 %s, 1056, %s" % (vTr, vA))
I("v_and_b32 %s, 3, %s" % (vB, vL))
I("v_lshl_add_u32 %s, %s, 3, %s" % (vTr, vB, vTr))
I("v_lshl_add_u32 %s, %s, 9, %s" % (vPubN, vN, vE))
I("v_lshl_add_u32 %s, %s, 16, %s" % (vPubB, vN, vE))
I("v_lshrrev_b32 %s, 5, %s" % (vA, vL))
I("v_mul_u32_u24 %s, 288, %s" % (vQPw, vA))
I("v_and_b32 %s, 31, %s" % (vB, vL))
I("v_lshl_add_u32 %s, %s, 3, %s" % (vQPw, vB, vQPw))
I("v_add_u32 %s, %d, %s" % (vQPw, R2, vQPw))
I("v_mul_u32_u24 %s, 288, %s" % (vQPr, vN))
I("v_add_u32 %s, %s, %s" % (vQPr, vQPr, vE))
I("v_add_u32 %s, %d, %s" % (vQPr, R2, vQPr))
I("s_lshl_b32 %s, %s, 3" % (sGrp, sH)); I("s_add_u32 %s, %s, %s" % (sGrp, sGrp, sJ))
I("s_lshl_b32 %s, %s, 3" % (sFS, sG)); I("s_add_u32 %s, %s, %s" % (sFS, sFS, sX8))
I("v_cmp_lt_u32 %s, 7, %s" % (sHi, vN))
k.wait_vm("xs")
a, b = ACC + 4, ACC + 5
I("v_dot2_f32_bf16 %s, %s, %s, 0" % (V(a), V(ACC), V(ACC)))
I("v_dot2_f32_bf16 %s, %s, %s, 0" % (V(b), V(ACC), sOnes))
for r in range(1, 4):
    I("v_dot2_f32_bf16 %s, %s, %s, %s" % (V(a), V(ACC + r), V(ACC + r), V(a)))
    I("v_dot2_f32_bf16 %s, %s, %s, %s" % (V(b), V(ACC + r), sOnes, V(b)))
for sh in (8, 4, 2, 1):
    I("v_add_f32_dpp %s, %s, %s row_ror:%d%s" % (V(a), V(a), V(a), sh, DPP))
    I("v_add_f32_dpp %s, %s, %s row_ror:%d%s" % (V(b), V(b), V(b), sh, DPP))
I("v_permlane16_swap_b32 %s, %s" % (V(a), V(b)))
I("v_add_f32 %s, %s, %s" % (V(a), V(a), V(b)))
I("v_mov_b32 %s, %s" % (V(b), V(a)))
I("v_permlane32_swap_b32 %s, %s" % (V(a), V(b)))
I("v_add_f32 %s, %s, %s" % (V(a), V(a), V(b)))
I("v_mov_b32 %s, %s" % (V(b), V(a)))
I("v_permlane16_swap_b32 %s, %s" % (V(a), V(b)))
I("v_mul_f32 %s, 0xbb000000, %s" % (V(ACC + 6), V(b)))
I("v_mul_f32 %s, 0x3b000000, %s" % (V(a), V(a)))
I("v_fma_f32 %s, -%s, %s, %s" % (V(a), V(ACC + 6), V(ACC + 6), V(a)))
I("v_max_f32 %s, 0, %s" % (V(a), V(a)))
I("v_add_f32 %s, 0x3727c5ac, %s" % (V(a), V(a)))
I("v_rsq_f32 %s, %s" % (V(ACC + 7), V(a)))
I("s_and_b32 %s, %s, 1" % (sA, sW)); I("s_lshl_b32 %s, %s, 3" % (sA, sA)); I("s_add_u32 %s, %s, %d" % (sA, sA, ST))
I("v_mov_b32 %s, %s" % (vA, sA))
set_exec(1)
I("ds_write_b64 %s, %s" % (vA, V(ACC + 6, 2)))
set_exec(-1)
I("s_lshl_b32 %s, %s, 5" % (sA, sW)); I("s_add_u32 %s, %s, %d" % (sA, sA, R1))
I("v_add_u32 %s, %s, %s" % (vA, sA, vTr))
I("v_and_b32 %s, 1, %s" % (vB, vN)); I("v_lshlrev_b32 %s, 3, %s" % (vB, vB)); I("v_add_u32 %s, %d, %s" % (vB, ST, vB))
I("s_mul_i32 %s, %s, 576" % (sA, sW))
I("v_add_u32 %s, %s, %s" % (vF, sA, vQPw))
k.wait_vm("wq", "xf", lgkm=0)
I("s_barrier")
stamp("B1")
WQF = PV + 16
for z in range(4):
    I("ds_read_b64_tr_b16 %s, %s offset:%d" % (V(WQF + 2*z, 2), vA, 256*z))
I("ds_read_b64 %s, %s" % (V(18, 2), vB))
I("s_add_u32 %s, %s, 1" % (sT, sT))
I("s_not_b32 %s, %s" % (sT2, sT))
I("v_mov_b32 %s, %s" % (V(GR), sT))
I("v_mov_b32 %s, %s" % (V(GR + 1), sT2))
I("s_lshl_b32 %s, %s, 10" % (sA, sGrp)); I("s_lshl_b32 %s, %s, 6" % (sB, sW)); I("s_add_u32 %s, %s, %s" % (sA, sA, sB))
I("s_add_u32 %s, %s, 0x%x" % (sA, sA, WS_H0))
def a0_like(frag, soff):
    k.lgkm(0)
    mfma(ACC, frag, XF, "0")
    mfma(ACC, frag + 4, XF + 4, ACC)
    for r in range(4):
        I("v_fmac_f32_dpp %s, %s, %s quad_perm:[2,2,2,2]%s" % (V(ACC + r), V(ACC + r), vNM, DPP))
    for r in range(4):
        I("v_mul_f32 %s, %s, %s" % (V(ACC + r), V(ACC + r), vRS))
    I("v_cvt_pk_bf16_f32 %s, %s, %s" % (V(GR + 2), V(ACC), V(ACC + 1)))
    I("v_cvt_pk_bf16_f32 %s, %s, %s" % (V(GR + 3), V(ACC + 2), V(ACC + 3)))
    set_exec(0x0003000300030003)
    I("buffer_store_dwordx4 %s, %s, %s, %s offen sc1" % (V(GR, 4), vPubN, WS, soff), tag="st")
    set_exec(-1)
a0_like(WQF, sA)
stamp("A0pub")
I("s_lshl_b32 %s, %s, 3" % (sC, sH)); I("s_add_u32 %s, %s, %s" % (sC, sC, sW)); I("s_lshl_b32 %s, %s, 10" % (sC, sC))
I("s_add_u32 %s, %s, 0x%x" % (sC, sC, WS_H0))
def ld_h0(tag): I("buffer_load_dwordx4 %s, %s, %s, %s offen sc1" % (V(ACC + 4, 4), vL16, WS, sC), tag=tag)
gather("h0", ld_h0, check64([ACC + 4]), after_first=ckv_group)
I("ds_write_b64 %s, %s" % (vF, V(ACC + 6, 2)))
k.lgkm(0)
I("s_barrier")
stamp("B2")
I("s_cmp_ge_u32 %s, 4" % sW)
I("s_cbranch_scc1 L_a1_end")
QPF = PV + 24
for ks in range(4):
    I("ds_read_b128 %s, %s offset:%d" % (V(QPF + 4*ks, 4), vQPr, 64*ks))
I("s_lshl_b32 %s, %s, 11" % (sC, sH)); I("s_lshl_b32 %s, %s, 8" % (sB, sJ)); I("s_add_u32 %s, %s, %s" % (sC, sC, sB))
I("s_lshl_b32 %s, %s, 6" % (sB, sW)); I("s_add_u32 %s, %s, %s" % (sC, sC, sB)); I("s_add_u32 %s, %s, 0x%x" % (sC, sC, WS_H1))
k.wait_vm("wuk")
def red_j():
    for sh in (8, 4, 2):
        for r in range(4):
            I("v_add_f32_dpp %s, %s, %s row_ror:%d%s" % (V(ACC + r), V(ACC + r), V(ACC + r), sh, DPP))
for ks in range(4):
    k.lgkm(3 - ks)
    mfma(ACC, PV + 4*ks, QPF + 4*ks, "0" if ks == 0 else ACC)
red_j()
import math, struct
SCALE = struct.unpack("<I", struct.pack("<f", math.log2(math.e) / math.sqrt(128.0)))[0]
for r in range(4): I("v_mul_f32 %s, 0x%08x, %s" % (V(ACC + r), SCALE, V(ACC + r)))
I("v_cvt_pk_bf16_f32 %s, %s, %s" % (V(GR + 2), V(ACC), V(ACC + 1)))
I("v_cvt_pk_bf16_f32 %s, %s, %s" % (V(GR + 3), V(ACC + 2), V(ACC + 3)))
set_exec(0x0003000300030003)
I("buffer_store_dwordx4 %s, %s, %s, %s offen sc1" % (V(GR, 4), vPubB, WS, sC), tag="st")
set_exec(-1)
ckv_group()
k.label("L_a1_end")
stamp("A1pub")
ckv_group()
ckv_group()
I("v_mul_u32_u24 %s, 1056, %s" % (vA, vN))
I("v_add3_u32 %s, %s, %s, %s" % (vA, vA, vE, sCKm0))
I("s_mul_i32 %s, %s, 544" % (sA, sW)); I("s_add_u32 %s, %s, %d" % (sA, sA, Q_))
I("v_lshl_add_u32 %s, %s, 3, %s" % (vB, vL, sA))
I("v_mul_u32_u24 %s, 544, %s" % (vC, vN)); I("v_add_u32 %s, %s, %s" % (vC, vC, vE)); I("v_add_u32 %s, %d, %s" % (vC, Q_, vC))
I("s_lshl_b32 %s, %s, 7" % (sA, sW))
I("v_add_u32 %s, %s, %s" % (vD, sA, vTr))
I("v_add_u32 %s, %d, %s" % (vF, 64*1056, vD))
I("s_lshr_b32 %s, %s, 5" % (sC, sTile)); I("s_lshl_b32 %s, %s, 16" % (sC, sC))
I("s_lshl_b32 %s, %s, 3" % (sA, sHG)); I("s_add_u32 %s, %s, %s" % (sA, sA, sW)); I("s_lshl_b32 %s, %s, 11" % (sA, sA))
I("s_add_u32 %s, %s, %s" % (sC, sC, sA)); I("s_add_u32 %s, %s, 0x%x" % (sC, sC, WS_H1))
vWO, vRow, vGU, vWD = V(TMP), V(TMP + 1), V(TMP + 2), V(TMP + 3)
I("v_bfe_u32 %s, %s, 3, 1" % (vWO, vL)); I("v_lshlrev_b32 %s, 2, %s" % (vRow, vWO))
I("v_lshl_add_u32 %s, %s, 5, %s" % (vWO, vS, vRow))
I("v_and_b32 %s, 7, %s" % (vG, vL)); I("v_lshlrev_b32 %s, 4, %s" % (vG, vG))
I("v_lshl_add_u32 %s, %s, 10, %s" % (vWO, vWO, vG))
I("v_and_b32 %s, 1, %s" % (vGU, vS)); I("v_lshl_add_u32 %s, %s, 5, %s" % (vRow, vGU, vRow))
I("v_lshrrev_b32 %s, 5, %s" % (vGU, vL)); I("v_add_u32 %s, %s, %s" % (vRow, vRow, vGU))
I("v_mul_u32_u24 %s, 2752, %s" % (vGU, vRow)); I("v_add_u32 %s, %s, %s" % (vGU, vGU, vG))
I("v_lshl_add_u32 %s, %s, 10, %s" % (vWD, vRow, vG))
def late_loads():
    I("s_lshl_b32 %s, %s, 6" % (sA, sJ)); I("s_add_u32 %s, %s, %s" % (sA, sA, sE)); I("s_mul_i32 %s, %s, 2752" % (sA, sA))
    I("s_lshl_b32 %s, %s, 7" % (sB, sFS)); I("s_add_u32 %s, %s, %s" % (sA, sA, sB))
    I("s_cmp_lt_u32 %s, 22" % sFS)
    I("s_cselect_b32 %s, %s, 0x7f000000" % (sA, sA))
    I("buffer_load_dwordx4 %s, %s, %s, %s offen nt" % (V(LATE + 16, 4), vGU, GA, sA), tag="late")
    I("buffer_load_dwordx4 %s, %s, %s, %s offen nt" % (V(LATE + 20, 4), vGU, UP, sA), tag="late")
    I("s_add_u32 %s, %s, 8192" % (sA, sD))
    I("buffer_load_dwordx4 %s, %s, %s, %s offen nt" % (V(LATE, 4), vF16, WUV, sD), tag="late")
    I("buffer_load_dwordx4 %s, %s, %s, %s offen nt" % (V(LATE + 4, 4), vF16, WUV, sA), tag="late")
    I("s_lshl_b32 %s, %s, 6" % (sA, sFS)); I("s_add_u32 %s, %s, %s" % (sA, sA, sE)); I("s_lshl_b32 %s, %s, 10" % (sA, sA))
    I("s_lshl_b32 %s, %s, 7" % (sB, sJ)); I("s_add_u32 %s, %s, %s" % (sA, sA, sB))
    I("buffer_load_dwordx4 %s, %s, %s, %s offen nt" % (V(LATE + 24, 4), vWD, DN, sA), tag="late")
    I("s_lshl_b32 %s, %s, 7" % (sA, sH)); I("s_add_u32 %s, %s, %s" % (sA, sA, sE)); I("s_lshl_b32 %s, %s, 10" % (sA, sA))
    I("s_add_u32 %s, %s, %s" % (sA, sA, sB))
    I("buffer_load_dwordx4 %s, %s, %s, %s offen nt" % (V(LATE + 8, 4), vWO, WO, sA), tag="late")
    I("buffer_load_dwordx4 %s, %s, %s, %s offen offset:1024 nt" % (V(LATE + 12, 4), vWO, WO, sA), tag="late")
k.wait_vm("ckv")
stamp("ckv")
def ld_h1(tag):
    for u in range(2):
        I("buffer_load_dwordx4 %s, %s, %s, %s offen offset:%d sc1" % (V(ACC + 4*u, 4), vL16, WS, sC, 1024*u), tag=tag)
def after_h1():
    late_loads()
    for kk in range(16):
        I("ds_read_b128 %s, %s offset:%d" % (V(QK + 4*kk, 4), vA, 64*kk))
gather("h1", ld_h1, check64([ACC, ACC + 4]), after_first=after_h1)
I("ds_write_b64 %s, %s" % (vB, V(ACC + 2, 2)))
I("ds_write_b64 %s, %s offset:%d" % (vB, V(ACC + 6, 2), 8*544))
k.lgkm(0)
I("s_barrier")
stamp("B3")
for ks in range(8):
    I("ds_read_b128 %s, %s offset:%d" % (V(QB + 4*ks, 4), vC, 64*ks))
def pv_reads(kp):
    for t in range(4):
        for q in range(2):
            base = vD if kp < 2 else vF
            I("ds_read_b64_tr_b16 %s, %s offset:%d" % (V(PV + 16*kp + 4*t + 2*q, 2), base, (32*(kp & 1) + 16*q)*1056 + 32*t))
D1, D2 = ACC, ACC + 4
I("v_and_b32 %s, 7, %s" % (V(ACC + 8), vN))
I("v_lshlrev_b32 %s, 5, %s" % (vB, V(ACC + 8))); I("v_add_u32 %s, %d, %s" % (vB, MX, vB))
I("s_lshl_b32 %s, %s, 2" % (sA, sW))
I("v_add_u32 %s, %s, %s" % (vA, sA, vB))
I("v_mul_u32_u24 %s, 288, %s" % (V(ACC + 9), V(ACC + 8))); I("v_add_u32 %s, %s, %s" % (V(ACC + 9), V(ACC + 9), vE))
I("v_add_u32 %s, %d, %s" % (V(ACC + 9), P_, V(ACC + 9)))
I("s_lshr_b32 %s, %s, 1" % (sA, sW)); I("s_lshl_b32 %s, %s, 6" % (sA, sA)); I("s_and_b32 %s, %s, 1" % (sB, sW)); I("s_lshl_b32 %s, %s, 3" % (sB, sB))
I("s_add_u32 %s, %s, %s" % (sA, sA, sB))
I("v_add_u32 %s, %s, %s" % (vG, sA, V(ACC + 9)))
for ks in range(8):
    k.lgkm(7 - ks)
    mfma(D1, QK + 4*ks, QB + 4*ks, "0" if ks == 0 else D1)
    mfma(D2, QK + 32 + 4*ks, QB + 4*ks, "0" if ks == 0 else D2)
pv_reads(0)
S = ACC + 12
for r in range(4): I("v_cndmask_b32 %s, %s, %s, %s" % (V(S + r), V(D1 + r), V(D2 + r), sHi))
for r in range(4): I("v_add_f32_dpp %s, %s, %s row_ror:8%s" % (V(S + r), V(S + r), V(S + r), DPP))
mx, mt = ACC + 10, ACC + 11
I("v_max3_f32 %s, %s, %s, %s" % (V(mx), V(S), V(S + 1), V(S + 2)))
I("v_max_f32 %s, %s, %s" % (V(mx), V(mx), V(S + 3)))
for sw in ("16", "32"):
    I("v_mov_b32 %s, %s" % (V(mt), V(mx)))
    I("v_permlane%s_swap_b32 %s, %s" % (sw, V(mx), V(mt)))
    I("v_max_f32 %s, %s, %s" % (V(mx), V(mx), V(mt)))
set_exec(0xff)
I("ds_write_b32 %s, %s" % (vA, V(mx)))
set_exec(-1)
k.lgkm(0)
I("s_barrier")
stamp("B4a")
I("ds_read_b128 %s, %s" % (V(ACC, 4), vB))
I("ds_read_b128 %s, %s offset:16" % (V(ACC + 4, 4), vB))
pv_reads(1)
k.lgkm(8)
I("v_max3_f32 %s, %s, %s, %s" % (V(mx), V(ACC), V(ACC + 1), V(ACC + 2)))
I("v_max3_f32 %s, %s, %s, %s" % (V(mt), V(ACC + 3), V(ACC + 4), V(ACC + 5)))
I("v_max3_f32 %s, %s, %s, %s" % (V(mx), V(mx), V(ACC + 6), V(ACC + 7)))
I("v_max_f32 %s, %s, %s" % (V(mx), V(mx), V(mt)))
for r in range(4): I("v_sub_f32 %s, %s, %s" % (V(S + r), V(S + r), V(mx)))
for r in range(4): I("v_exp_f32 %s, %s" % (V(S + r), V(S + r)))
I("v_cvt_pk_bf16_f32 %s, %s, %s" % (V(ACC), V(S), V(S + 1)))
I("v_cvt_pk_bf16_f32 %s, %s, %s" % (V(ACC + 1), V(S + 2), V(S + 3)))
set_exec(0x00ff00ff00ff00ff)
I("ds_write_b64 %s, %s" % (vG, V(ACC, 2)))
set_exec(-1)
k.lgkm(0)
I("s_barrier")
stamp("B4b")
PF = QB
for kp in range(4):
    I("ds_read_b128 %s, %s offset:%d" % (V(PF + 4*kp, 4), V(ACC + 9), 64*kp))
pv_reads(2)
I("v_lshrrev_b32 %s, 3, %s" % (vA, vN)); I("v_lshl_add_u32 %s, %s, 6, %s" % (vA, vA, vE))
I("v_lshl_add_u32 %s, %s, 17, %s" % (vA, V(ACC + 8), vA))
I("s_lshl_b32 %s, %s, 6" % (sC, sHG)); I("s_add_u32 %s, %s, %s" % (sC, sC, sW)); I("s_lshl_b32 %s, %s, 14" % (sC, sC))
I("s_lshl_b32 %s, %s, 8" % (sA, sTile)); I("s_add_u32 %s, %s, %s" % (sC, sC, sA)); I("s_add_u32 %s, %s, 0x%x" % (sC, sC, WS_H2))
O = QB + 16
G0, G1 = ACC, ACC + 4
lsum = ACC + 16
k.lgkm(8)
pv_reads(3)
for kp in range(2):
    for t in range(4): mfma(O + 4*t, PV + 16*kp + 4*t, PF + 4*kp, "0" if kp == 0 else O + 4*t)
I("v_dot2_f32_bf16 %s, %s, %s, 0" % (V(lsum), V(PF), sOnes))
for r in range(1, 16): I("v_dot2_f32_bf16 %s, %s, %s, %s" % (V(lsum), V(PF + r), sOnes, V(lsum)))
k.lgkm(8)
for t in range(4): mfma(O + 4*t, PV + 32 + 4*t, PF + 8, O + 4*t)
for sw in ("16", "32"):
    I("v_mov_b32 %s, %s" % (V(mt), V(lsum)))
    I("v_permlane%s_swap_b32 %s, %s" % (sw, V(lsum), V(mt)))
    I("v_add_f32 %s, %s, %s" % (V(lsum), V(lsum), V(mt)))
k.lgkm(0)
for t in range(4): mfma(O + 4*t, PV + 48 + 4*t, PF + 12, O + 4*t)
I("v_mov_b32 %s, %s" % (V(G0 + 2), V(mx))); I("v_mov_b32 %s, %s" % (V(G0 + 3), sT))
I("v_mov_b32 %s, %s" % (V(G1 + 2), V(lsum))); I("v_mov_b32 %s, %s" % (V(G1 + 3), sT))
for u, G in ((0, G0), (1, G1)):
    for r in range(4): I("v_cndmask_b32 %s, %s, %s, %s" % (V(S + r), V(O + 8*u + r), V(O + 8*u + 4 + r), sHi))
    I("v_cvt_pk_bf16_f32 %s, %s, %s" % (V(G), V(S), V(S + 1)))
    I("v_cvt_pk_bf16_f32 %s, %s, %s" % (V(G + 1), V(S + 2), V(S + 3)))
    I("buffer_store_dwordx4 %s, %s, %s, %s offen offset:%d sc1" % (V(G, 4), vA, WS, sC, 128*u), tag="st2")
stamp("Bpub")
I("s_barrier")
I("s_mul_i32 %s, %s, 2112" % (sA, sW))
I("v_add_u32 %s, %s, %s" % (vA, sA, vL16))
I("v_lshrrev_b32 %s, 5, %s" % (vG, vL))
I("v_mul_u32_u24 %s, 1056, %s" % (vB, vG)); I("v_add_u32 %s, %s, %s" % (vB, sA, vB))
I("v_bfe_u32 %s, %s, 3, 2" % (vD, vL))
I("v_lshl_add_u32 %s, %s, 8, %s" % (vB, vD, vB))
I("v_and_b32 %s, 7, %s" % (vF, vL))
I("v_lshl_add_u32 %s, %s, 4, %s" % (vB, vF, vB))
I("s_mul_i32 %s, %s, 1088" % (sA, sW))
I("v_mul_u32_u24 %s, 544, %s" % (vC, vG)); I("v_add_u32 %s, %s, %s" % (vC, sA, vC))
I("v_lshl_add_u32 %s, %s, 7, %s" % (vC, vD, vC))
I("v_lshl_add_u32 %s, %s, 4, %s" % (vC, vF, vC))
k.wait_vm("late")
I("ds_write_b128 %s, %s offset:%d" % (vB, V(LATE + 16, 4), GUI))
I("ds_write_b128 %s, %s offset:%d" % (vB, V(LATE + 20, 4), GUI + 128))
I("ds_write_b128 %s, %s offset:%d" % (vA, V(LATE, 4), WUVI))
I("ds_write_b128 %s, %s offset:%d" % (vA, V(LATE + 4, 4), WUVI + 1056))
I("ds_write_b128 %s, %s offset:%d" % (vA, V(LATE + 8, 4), WOI))
I("ds_write_b128 %s, %s offset:%d" % (vA, V(LATE + 12, 4), WOI + 1056))
I("ds_write_b128 %s, %s offset:%d" % (vC, V(LATE + 24, 4), WDI))
I("s_lshl_b32 %s, %s, 5" % (sA, sW))
I("v_add_u32 %s, %s, %s" % (vA, sA, vTr))
I("v_lshrrev_b32 %s, 2, %s" % (vB, vL)); I("v_mul_u32_u24 %s, 544, %s" % (vB, vB))
I("v_and_b32 %s, 3, %s" % (vC, vL)); I("v_lshl_add_u32 %s, %s, 3, %s" % (vB, vC, vB)); I("v_add_u32 %s, %s, %s" % (vB, sA, vB))
k.lgkm(0)
I("s_barrier")
stamp("B5")
GUF = QK; UVF = QK + 8; WOF = QK + 16; WDF = QK + 32; HBF = QK + 40
for z in range(4): I("ds_read_b64_tr_b16 %s, %s offset:%d" % (V(GUF + 2*z, 2), vA, GUI + 256*z))
for z in range(4): I("ds_read_b64_tr_b16 %s, %s offset:%d" % (V(UVF + 2*z, 2), vA, WUVI + 256*z))
I("s_cmp_ge_u32 %s, 4" % sW)
I("s_cbranch_scc1 L_lf_end")
for z in range(8): I("ds_read_b64_tr_b16 %s, %s offset:%d" % (V(WOF + 2*z, 2), vA, WOI + 128*z))
for z in range(4): I("ds_read_b64_tr_b16 %s, %s offset:%d" % (V(WDF + 2*z, 2), vB, WDI + 128*z))
for r in range(8): I("v_mov_b32 %s, 0" % V(HBF + r))
k.label("L_lf_end")
I("s_cmp_ge_u32 %s, 22" % sFS)
I("s_cbranch_scc1 L_f1_end")
I("s_lshl_b32 %s, %s, 3" % (sA, sFS)); I("s_add_u32 %s, %s, %s" % (sA, sA, sJ)); I("s_lshl_b32 %s, %s, 10" % (sA, sA))
I("s_lshl_b32 %s, %s, 6" % (sB, sW)); I("s_add_u32 %s, %s, %s" % (sA, sA, sB)); I("s_add_u32 %s, %s, 0x%x" % (sA, sA, WS_HF))
a0_like(GUF, sA)
k.label("L_f1_end")
I("v_lshrrev_b32 %s, 3, %s" % (vG, vL)); I("v_lshlrev_b32 %s, 8, %s" % (vA, vG)); I("v_lshl_add_u32 %s, %s, 4, %s" % (vA, vF, vA))
I("s_lshl_b32 %s, %s, 14" % (sC, sGrp)); I("s_lshl_b32 %s, %s, 11" % (sA, sW)); I("s_add_u32 %s, %s, %s" % (sC, sC, sA))
I("s_add_u32 %s, %s, 0x%x" % (sC, sC, WS_H2))
I("v_and_b32 %s, 1, %s" % (vB, vS)); I("v_lshlrev_b32 %s, 6, %s" % (vB, vB)); I("v_lshl_add_u32 %s, %s, 3, %s" % (vB, vF, vB))
I("v_lshrrev_b32 %s, 5, %s" % (vC, vL)); I("v_lshl_add_u32 %s, %s, 2, %s" % (vB, vC, vB))
I("s_mul_i32 %s, %s, 160" % (sA, sW)); I("s_add_u32 %s, %s, %d" % (sA, sA, OW)); I("v_add_u32 %s, %s, %s" % (vB, sA, vB))
I("s_lshl_b32 %s, %s, 3" % (sA, sW)); I("s_add_u32 %s, %s, %d" % (sA, sA, ST2)); I("v_mov_b32 %s, %s" % (vC, sA))
I("v_mul_u32_u24 %s, 160, %s" % (vD, vF)); I("v_add_u32 %s, %s, %s" % (vD, vD, vE)); I("v_add_u32 %s, %d, %s" % (vD, OW, vD))
I("v_lshlrev_b32 %s, 3, %s" % (V(TMP), vF)); I("v_add_u32 %s, %d, %s" % (V(TMP), ST2, V(TMP)))
I("v_lshrrev_b32 %s, 2, %s" % (V(TMP + 1), vN)); I("v_lshl_add_u32 %s, %s, 9, %s" % (V(TMP + 1), V(TMP + 1), vE))
k.wait_vm("st2")
stamp("st2ack")
H = PV
def ld_h2(tag):
    for u in range(2):
        I("buffer_load_dwordx4 %s, %s, %s, %s offen offset:%d sc1" % (V(H + 4*u, 4), vA, WS, sC, 128*u), tag=tag)
def chk_h2():
    I("v_cmp_ne_u32 vcc, %s, %s" % (sT, V(H + 3)))
    I("v_cmp_ne_u32 %s, %s, %s" % (sM, sT, V(H + 7)))
    I("s_or_b64 vcc, vcc, %s" % sM)
gather("h2", ld_h2, chk_h2)
stamp("H2")
mw, wt, tt = ACC + 8, ACC + 9, ACC + 10
Z = ACC
I("v_max_f32_dpp %s, %s, %s row_ror:8%s" % (V(mw), V(H + 2), V(H + 2), DPP))
for u in range(2):
    I("v_lshlrev_b32 %s, 16, %s" % (V(Z + 4*u), V(H + 4*u)))
    I("v_and_b32 %s, 0xffff0000, %s" % (V(Z + 4*u + 1), V(H + 4*u)))
for n_, sw in enumerate(("16", "32")):
    I("v_mov_b32 %s, %s" % (V(tt), V(mw)))
    I("v_lshlrev_b32 %s, 16, %s" % (V(Z + 4*n_ + 2), V(H + 4*n_ + 1)))
    I("v_and_b32 %s, 0xffff0000, %s" % (V(Z + 4*n_ + 3), V(H + 4*n_ + 1)))
    I("v_permlane%s_swap_b32 %s, %s" % (sw, V(mw), V(tt)))
    I("v_max_f32 %s, %s, %s" % (V(mw), V(mw), V(tt)))
I("v_sub_f32 %s, %s, %s" % (V(wt), V(H + 2), V(mw)))
I("v_exp_f32 %s, %s" % (V(wt), V(wt)))
for r in range(8): I("v_mul_f32 %s, %s, %s" % (V(Z + r), V(Z + r), V(wt)))
lw = mw + 1
I("v_mul_f32 %s, %s, %s" % (V(lw), V(H + 6), V(wt)))
for r in range(4): I("v_permlane16_swap_b32 %s, %s" % (V(Z + r), V(Z + 4 + r)))
for r in range(4): I("v_add_f32 %s, %s, %s" % (V(Z + r), V(Z + r), V(Z + 4 + r)))
I("v_add_f32_dpp %s, %s, %s row_ror:8%s" % (V(lw), V(lw), V(lw), DPP))
for r in range(2): I("v_permlane32_swap_b32 %s, %s" % (V(Z + r), V(Z + 2 + r)))
I("v_mov_b32 %s, %s" % (V(tt), V(lw)))
for r in range(2): I("v_add_f32 %s, %s, %s" % (V(Z + r), V(Z + r), V(Z + 2 + r)))
I("v_permlane16_swap_b32 %s, %s" % (V(lw), V(tt)))
for r in range(2): I("v_add_f32_dpp %s, %s, %s row_ror:8%s" % (V(Z + r), V(Z + r), V(Z + r), DPP))
I("v_add_f32 %s, %s, %s" % (V(lw), V(lw), V(tt)))
I("v_cvt_pk_bf16_f32 %s, %s, %s" % (V(Z), V(Z), V(Z + 1)))
I("v_mov_b32 %s, %s" % (V(tt), V(lw)))
set_exec(0x00ff00ff00ff00ff)
I("ds_write_b32 %s, %s" % (vB, V(Z)))
set_exec(-1)
I("v_permlane32_swap_b32 %s, %s" % (V(lw), V(tt)))
I("v_add_f32 %s, %s, %s" % (V(lw), V(lw), V(tt)))
set_exec(1)
I("ds_write_b64 %s, %s" % (vC, V(mw, 2)))
set_exec(-1)
k.lgkm(0)
I("s_barrier")
OF = PV + 8
I("ds_read_b64 %s, %s" % (V(mw, 2), V(TMP)))
I("ds_read_b128 %s, %s" % (V(OF, 4), vD))
I("ds_read_b128 %s, %s offset:64" % (V(OF + 4, 4), vD))
I("s_lshl_b32 %s, %s, 10" % (sC, sGrp)); I("s_lshl_b32 %s, %s, 6" % (sA, sW)); I("s_add_u32 %s, %s, %s" % (sC, sC, sA))
I("s_add_u32 %s, %s, 0x%x" % (sC, sC, WS_H25))
k.lgkm(2)
mb_ = ACC + 11; e_ = ACC + 12
I("v_max_f32_dpp %s, %s, %s quad_perm:[1,0,3,2]%s" % (V(mb_), V(mw), V(mw), DPP))
I("v_max_f32_dpp %s, %s, %s quad_perm:[2,3,0,1]%s" % (V(mb_), V(mb_), V(mb_), DPP))
k.lgkm(0)
mfma(ACC, UVF, OF, "0")
mfma(ACC, UVF + 4, OF + 4, ACC)
I("v_sub_f32 %s, %s, %s" % (V(e_), V(mw), V(mb_)))
I("v_exp_f32 %s, %s" % (V(e_), V(e_)))
I("v_mul_f32 %s, %s, %s" % (V(lw), V(lw), V(e_)))
I("v_add_f32_dpp %s, %s, %s quad_perm:[1,0,3,2]%s" % (V(lw), V(lw), V(lw), DPP))
I("v_add_f32_dpp %s, %s, %s quad_perm:[2,3,0,1]%s" % (V(lw), V(lw), V(lw), DPP))
I("v_rcp_f32 %s, %s" % (V(lw), V(lw)))
I("v_mul_f32 %s, %s, %s" % (V(e_), V(e_), V(lw)))
for r in range(4): I("v_mul_f32 %s, %s, %s" % (V(ACC + r), V(ACC + r), V(e_)))
for qp in ("[1,0,3,2]", "[2,3,0,1]"):
    for r in range(4): I("v_add_f32_dpp %s, %s, %s quad_perm:%s%s" % (V(ACC + r), V(ACC + r), V(ACC + r), qp, DPP))
I("v_cvt_pk_bf16_f32 %s, %s, %s" % (V(GR + 2), V(ACC), V(ACC + 1)))
I("v_cvt_pk_bf16_f32 %s, %s, %s" % (V(GR + 3), V(ACC + 2), V(ACC + 3)))
set_exec(0x0011001100110011)
I("buffer_store_dwordx4 %s, %s, %s, %s offen sc1" % (V(GR, 4), V(TMP + 1), WS, sC), tag="st")
set_exec(-1)
stamp("Cpub")
I("s_cmp_ge_u32 %s, 4" % sW)
I("s_cbranch_scc1 L_f2")
I("s_lshl_b32 %s, %s, 13" % (sC, sH)); I("s_lshl_b32 %s, %s, 11" % (sA, sW)); I("s_add_u32 %s, %s, %s" % (sC, sC, sA))
I("s_add_u32 %s, %s, 0x%x" % (sC, sC, WS_H25))
I("s_mul_i32 %s, %s, 1152" % (sA, sW))
I("v_add_u32 %s, %s, %s" % (vA, sA, vQPw))
def ld_h25(tag):
    for u in range(2):
        I("buffer_load_dwordx4 %s, %s, %s, %s offen offset:%d sc1" % (V(H + 4*u, 4), vL16, WS, sC, 1024*u), tag=tag)
gather("h25", ld_h25, check64([H, H + 4]))
I("ds_write_b64 %s, %s" % (vA, V(H + 2, 2)))
I("ds_write_b64 %s, %s offset:576" % (vA, V(H + 6, 2)))
I("s_branch L_b7")
k.label("L_f2")
I("s_cmp_ge_u32 %s, 22" % sFS)
I("s_cbranch_scc1 L_b7")
I("v_lshlrev_b32 %s, 10, %s" % (vA, vF)); I("v_lshl_add_u32 %s, %s, 4, %s" % (vA, vG, vA))
I("s_lshl_b32 %s, %s, 13" % (sC, sFS)); I("s_bfe_u32 %s, %s, 0x10001" % (sA, sW)); I("s_lshl_b32 %s, %s, 9" % (sB, sA))
I("s_add_u32 %s, %s, %s" % (sC, sC, sB)); I("s_and_b32 %s, %s, 1" % (sB, sW)); I("s_lshl_b32 %s, %s, 7" % (sD, sB))
I("s_add_u32 %s, %s, %s" % (sC, sC, sD)); I("s_add_u32 %s, %s, 0x%x" % (sC, sC, WS_HF))
I("s_mul_i32 %s, %s, 160" % (sA, sA)); I("s_lshl_b32 %s, %s, 6" % (sB, sB)); I("s_add_u32 %s, %s, %s" % (sA, sA, sB)); I("s_add_u32 %s, %s, %d" % (sA, sA, HB))
I("v_lshl_add_u32 %s, %s, 3, %s" % (vB, vG, sA))
def ld_hf(tag):
    for u in range(2):
        I("buffer_load_dwordx4 %s, %s, %s, %s offen offset:%d sc1" % (V(H + 4*u, 4), vA, WS, sC, 256*u), tag=tag)
gather("hf", ld_hf, check64([H, H + 4]))
for u in range(2):
    for p in range(2):
        I("v_lshlrev_b32 %s, 16, %s" % (V(Z + 4*u + 2*p), V(H + 4*u + 2 + p)))
        I("v_and_b32 %s, 0xffff0000, %s" % (V(Z + 4*u + 2*p + 1), V(H + 4*u + 2 + p)))
for ctl in ("quad_perm:[1,0,3,2]", "quad_perm:[2,3,0,1]", "row_half_mirror"):
    for r in range(8): I("v_add_f32_dpp %s, %s, %s %s%s" % (V(Z + r), V(Z + r), V(Z + r), ctl, DPP))
for r in range(4): I("v_mul_f32 %s, 0xbfb8aa3b, %s" % (V(Z + r), V(Z + r)))
for r in range(4): I("v_exp_f32 %s, %s" % (V(Z + r), V(Z + r)))
for r in range(4): I("v_add_f32 %s, 1.0, %s" % (V(Z + r), V(Z + r)))
for r in range(4): I("v_rcp_f32 %s, %s" % (V(Z + r), V(Z + r)))
for r in range(4): I("v_mul_f32 %s, %s, %s" % (V(Z + r), V(Z + r), V(Z + 4 + r)))
I("v_cvt_pk_bf16_f32 %s, %s, %s" % (V(Z), V(Z), V(Z + 1)))
I("v_cvt_pk_bf16_f32 %s, %s, %s" % (V(Z + 1), V(Z + 2), V(Z + 3)))
set_exec(0x0101010101010101)
I("ds_write_b64 %s, %s" % (vB, V(Z, 2)))
set_exec(-1)
k.label("L_b7")
k.lgkm(0)
I("s_barrier")
stamp("B7")
I("s_cmp_ge_u32 %s, 4" % sW)
I("s_cbranch_scc1 L_fin")
CPF = PV + 16
for ks in range(4):
    I("ds_read_b128 %s, %s offset:%d" % (V(CPF + 4*ks, 4), vQPr, 64*ks))
I("s_cmp_ge_u32 %s, 22" % sFS)
I("s_cbranch_scc1 L_d_nof")
I("v_mul_u32_u24 %s, 160, %s" % (vA, vN)); I("v_add_u32 %s, %s, %s" % (vA, vA, vE)); I("v_add_u32 %s, %d, %s" % (vA, HB, vA))
set_exec(0x0003000300030003)
I("ds_read_b128 %s, %s" % (V(HBF, 4), vA))
I("ds_read_b128 %s, %s offset:64" % (V(HBF + 4, 4), vA))
set_exec(-1)
k.label("L_d_nof")
I("s_lshl_b32 %s, %s, 13" % (sC, sJ)); I("s_lshr_b32 %s, %s, 1" % (sA, sW)); I("s_lshl_b32 %s, %s, 12" % (sA, sA)); I("s_add_u32 %s, %s, %s" % (sC, sC, sA))
I("s_lshl_b32 %s, %s, 7" % (sA, sH)); I("s_add_u32 %s, %s, %s" % (sC, sC, sA))
I("s_and_b32 %s, %s, 1" % (sA, sW)); I("s_lshl_b32 %s, %s, 6" % (sA, sA)); I("s_add_u32 %s, %s, %s" % (sC, sC, sA))
I("s_add_u32 %s, %s, 0x%x" % (sC, sC, WS_H3))
k.lgkm(0)
for ks in range(4): mfma(ACC, WOF + 4*ks, CPF + 4*ks, "0" if ks == 0 else ACC)
for ks in range(2): mfma(ACC, WDF + 4*ks, HBF + 4*ks, ACC)
red_j()
I("v_cvt_pk_bf16_f32 %s, %s, %s" % (V(GR + 2), V(ACC), V(ACC + 1)))
I("v_cvt_pk_bf16_f32 %s, %s, %s" % (V(GR + 3), V(ACC + 2), V(ACC + 3)))
set_exec(0x0003000300030003)
I("buffer_store_dwordx4 %s, %s, %s, %s offen sc1" % (V(GR, 4), vPubB, WS, sC), tag="st")
set_exec(-1)
I("s_branch L_OUT")
k.label("L_fin")
I("s_cmp_lg_u32 %s, 4" % sW)
I("s_cbranch_scc1 L_OUT")
I("s_cmp_ge_u32 s2, 32")
I("s_cbranch_scc1 L_OUT")
I("v_lshl_add_u32 %s, %s, 2, %s" % (vA, vF, vS))
I("v_lshlrev_b32 %s, 1, %s" % (vA, vA))
I("s_lshl_b32 %s, s2, 6" % sD)
I("buffer_load_ushort %s, %s, %s, %s offen" % (vB, vA, X, sD), tag="xo")
I("s_lshl_b32 %s, s2, 12" % sC); I("s_add_u32 %s, %s, 0x%x" % (sC, sC, WS_H3))
def ld_h3(tag):
    for u in range(4):
        I("buffer_load_dwordx4 %s, %s, %s, %s offen offset:%d sc1" % (V(H + 4*u, 4), vL16, WS, sC, 1024*u), tag=tag)
gather("h3", ld_h3, check64([H, H + 4, H + 8, H + 12]))
for u in range(4):
    for p in range(2):
        I("v_lshlrev_b32 %s, 16, %s" % (V(Z + 4*u + 2*p), V(H + 4*u + 2 + p)))
        I("v_and_b32 %s, 0xffff0000, %s" % (V(Z + 4*u + 2*p + 1), V(H + 4*u + 2 + p)))
for r in range(4):
    I("v_add_f32 %s, %s, %s" % (V(Z + r), V(Z + r), V(Z + 4 + r)))
    I("v_add_f32 %s, %s, %s" % (V(Z + 8 + r), V(Z + 8 + r), V(Z + 12 + r)))
for r in range(4): I("v_add_f32 %s, %s, %s" % (V(Z + r), V(Z + r), V(Z + 8 + r)))
I("v_lshlrev_b32 %s, 16, %s" % (vB, vB))
I("v_permlane16_swap_b32 %s, %s" % (V(Z), V(Z + 1)))
I("v_permlane16_swap_b32 %s, %s" % (V(Z + 2), V(Z + 3)))
I("v_add_f32 %s, %s, %s" % (V(Z), V(Z), V(Z + 1)))
I("v_add_f32 %s, %s, %s" % (V(Z + 2), V(Z + 2), V(Z + 3)))
I("v_permlane32_swap_b32 %s, %s" % (V(Z), V(Z + 2)))
I("v_add_f32 %s, %s, %s" % (V(Z), V(Z), V(Z + 2)))
I("v_add_f32_dpp %s, %s, %s row_ror:8%s" % (V(Z), V(Z), V(Z), DPP))
I("v_add_f32 %s, %s, %s" % (V(Z), V(Z), vB))
I("v_cvt_pk_bf16_f32 %s, %s, %s" % (V(Z), V(Z), V(Z)))
set_exec(0x00ff00ff00ff00ff)
I("buffer_store_short %s, %s, %s, %s offen" % (V(Z), vA, OUT, sD), tag="st")
I("s_cmp_lg_u32 s2, 0")
I("s_cbranch_scc1 L_OUT")
set_exec(1)
I("v_mov_b32 %s, 0" % vA)
I("buffer_store_dword %s, %s, %s, 0 offen sc1" % (V(GR), vA, WS), tag="st")
k.label("L_OUT")
if STAMP:
    set_exec(-1)
    stamp("end")
    k.lgkm(0)
    I("s_lshl_b32 %s, s2, 10" % sA); I("s_lshl_b32 %s, %s, 7" % (sB, sW)); I("s_add_u32 %s, %s, %s" % (sA, sA, sB)); I("s_add_u32 %s, %s, 0x%x" % (sA, sA, WS_STAMP))
    I("v_mov_b32 %s, 0" % vA)
    set_exec(1)
    for n in range(nstamp[0]):
        I("v_mov_b32 %s, s%d" % (vB, STAMP0 + 2*n))
        I("buffer_store_dword %s, %s, %s, %s offen offset:%d" % (vB, vA, WS, sA, 4*n))
k.label("L_END")
I("s_endpgm")
k.raw('''.section .rodata,"a"
.p2align 6
.amdhsa_kernel %s
  .amdhsa_next_free_vgpr 256
  .amdhsa_next_free_sgpr 102
  .amdhsa_accum_offset 256
  .amdhsa_group_segment_fixed_size 0
  .amdhsa_kernarg_size 104
  .amdhsa_user_sgpr_count 2
  .amdhsa_user_sgpr_kernarg_segment_ptr 1
  .amdhsa_system_sgpr_workgroup_id_x 1
  .amdhsa_float_denorm_mode_32 3
.end_amdhsa_kernel''' % KN)
open(sys.argv[1], "w").write(k.text() + ("; STAMPS " + ",".join(names) + "\n" if STAMP else ""))
print("instructions:", k.count, "stamps:", nstamp[0], "lds:", LDS_SIZE, file=sys.stderr)
```

```python
import sys, os
from asmlib import Asm
KN = "parallel_sum__compressed_kv_cla__glu_gated_glu__decode_kernel"
STAMP = int(os.environ.get("STAMP", "0"))
SPIN_MAX = 20000

WS_H0 = 0x10000
WS_H1 = WS_H0 + 0x40000
WS_H25 = WS_H1 + 0x20000
WS_HF = WS_H25 + 0x40000
WS_H3 = WS_HF + 0x40000
WS_H2 = 0x200000
WS_STAMP = 0x800000
WS_SIZE = 0x10000000
CKV = 0
R1 = 135168
Q_ = R1; P_ = R1 + 8704; MX = R1 + 11008; OW = R1 + 11520; ST2 = R1 + 12800; HB = R1 + 12864
R2 = R1 + 16896
ST = R2 + 4608
LDS_SIZE = ST + 64
WUVI = 0; WOI = 16896; GUI = 33792; WDI = 50688
X, CK, WQ, WUK, WUV, WO, GA, UP, DN, OUT, WS = ["s[%d:%d]" % (4 + 4*k, 7 + 4*k) for k in range(11)]
sW = "s3"; sX8 = "s48"; sI = "s49"; sJ = "s50"; sH = "s51"; sT = "s52"; sT2 = "s53"; sTT = "s[52:53]"
sA = "s54"; sB = "s55"; sG = "s56"; sOnes = "s57"; sCKoff = "s58"; sCKm0 = "s59"; sCKk = "s60"; sHG = "s61"
sTile = "s62"; sFS = "s63"; sSpin = "s64"; sC = "s65"; sM = "s[66:67]"; sHi = "s[68:69]"; sD = "s70"; sE = "s71"
sGrp = "s72"
STAMP0 = 74
vL = "v1"; vN = "v2"; vS = "v3"; vL16 = "v4"; vTr = "v5"
vF16 = "v6"; vA = "v7"; vB = "v8"; vPubN = "v9"; vPubB = "v10"; vQPw = "v11"; vQPr = "v12"; vC = "v13"; vD = "v14"
vE = "v15"; vF = "v16"; vG = "v17"; vNM = "v18"; vRS = "v19"
def V(a, n=1): return "v%d" % a if n == 1 else "v[%d:%d]" % (a, a + n - 1)
XF = 20
LATE = 28
GR = 56
TMP = 60
QK = 64; PV = 128; QB = 192; ACC = 224

k = Asm()
I = k.I
nstamp = [0]
SKIP = os.environ.get("SKIP", "kernarg,B4a,st2ack").split(",")
names = []
def stamp(name):
    if not STAMP or name in SKIP: return
    n = nstamp[0]; nstamp[0] += 1
    names.append(name)
    assert n < 14
    k.c("stamp %d %s" % (n, name))
    I("s_memrealtime s[%d:%d]" % (STAMP0 + 2*n, STAMP0 + 2*n + 1))

def set_exec(mask):
    if mask == -1: I("s_mov_b64 exec, -1")
    else:
        I("s_mov_b32 exec_lo, 0x%08x" % (mask & 0xffffffff)); I("s_mov_b32 exec_hi, 0x%08x" % (mask >> 32))

def mfma(d, a, b, c):
    I("v_mfma_f32_16x16x32_bf16 %s, %s, %s, %s" % (V(d, 4), V(a, 4), V(b, 4), V(c, 4) if isinstance(c, int) else c))

DPP = " row_mask:0xf bank_mask:0xf"
def ckv_group():
    I("s_add_u32 %s, %s, %s" % (sA, sHG, sCKk))
    I("s_and_b32 %s, %s, 3" % (sA, sA))
    I("s_mul_i32 %s, %s, %d" % (sB, sA, 4*1056))
    I("s_add_u32 m0, %s, %s" % (sB, sCKm0))
    I("s_lshl_b32 %s, %s, 12" % (sA, sA))
    I("s_add_u32 %s, %s, %s" % (sA, sA, sCKoff))
    for r in range(4):
        I("buffer_load_dwordx4 %s, %s, %s offen offset:%d nt lds" % (vL16, CK, sA, 1024*r), tag="ckv")
        if r < 3: I("s_add_u32 m0, m0, 32")
    I("s_add_u32 %s, %s, 1" % (sCKk, sCKk))

def gather(name, loads, check, after_first=None):
    Lr = k.newlabel("L_retry_" + name); Ld = k.newlabel("L_done_" + name)
    loads(name)
    if after_first: after_first()
    k.wait_vm(name)
    check()
    I("s_cbranch_scc0 %s" % Ld)
    I("s_mov_b32 %s, 0" % sSpin)
    k.label(Lr)
    I("s_add_u32 %s, %s, 1" % (sSpin, sSpin))
    I("s_cmp_gt_u32 %s, %d" % (sSpin, SPIN_MAX))
    I("s_cbranch_scc1 L_END")
    loads(name)
    k.wait_vm0()
    check()
    I("s_cbranch_scc1 %s" % Lr)
    k.label(Ld)

def check64(regs):
    def f():
        for n, r in enumerate(regs):
            I("v_cmp_ne_u64 %s, %s, %s" % ("vcc" if n == 0 else sM, sTT, V(r, 2)))
            if n > 0: I("s_or_b64 vcc, vcc, %s" % sM)
        if len(regs) == 1: I("s_cmp_lg_u64 vcc, 0")
    return f

hdr = open("cdna_kernels/%s.s.ref" % KN[:-7]).read().split("\n")
for ln in hdr:
    if ln.startswith("; @launch"): break
    k.raw(ln)
k.raw("; @launch grid=(256,1,1) block=(512,1,1) lds=%d" % LDS_SIZE)
k.raw('.amdgcn_target "amdgcn-amd-amdhsa--gfx950"\n.text\n.globl %s\n.p2align 12\n.p2align 8\n.type %s,@function\n%s:' % (KN, KN, KN))

stamp("entry")
I("s_cmp_ge_u32 s2, 256")
I("s_cbranch_scc1 L_END")
for srd, off in ((4, 0), (12, 16), (16, 24), (8, 8), (44, 96)):
    I("s_load_dwordx2 s[%d:%d], s[0:1], %d" % (srd, srd + 1, off))
I("v_lshrrev_b32 %s, 6, v0" % vA)
I("v_and_b32 %s, 63, v0" % vL)
I("v_readfirstlane_b32 %s, %s" % (sW, vA))
I("v_and_b32 %s, 15, v0" % vN)
I("v_lshrrev_b32 %s, 4, %s" % (vS, vL))
I("v_lshlrev_b32 %s, 4, %s" % (vL16, vL))
I("s_and_b32 %s, s2, 7" % sX8)
I("s_lshr_b32 %s, s2, 3" % sI)
I("s_and_b32 %s, %s, 7" % (sJ, sI))
I("s_lshr_b32 %s, %s, 3" % (sG, sI))
I("s_lshl_b32 %s, %s, 2" % (sH, sX8))
I("s_add_u32 %s, %s, %s" % (sH, sH, sG))
sizes = {4: 2048, 8: 8 << 20, 12: 4 << 20, 16: 4 << 20, 20: 4 << 20, 24: 4 << 20, 28: 512*1376*2, 32: 512*1376*2, 36: 512*1376*2, 40: 2048, 44: WS_SIZE}
for srd in (4, 12, 16, 8, 44):
    I("s_mov_b32 s%d, 0x%x" % (srd + 2, sizes[srd])); I("s_mov_b32 s%d, 0x20000" % (srd + 3))
I("s_mov_b32 %s, 0x3f803f80" % sOnes)
I("v_and_b32 %s, 1, %s" % (vA, vS))
I("v_lshlrev_b32 %s, 15, %s" % (vA, vA))
I("v_lshrrev_b32 %s, 5, %s" % (vB, vL))
I("v_lshlrev_b32 %s, 18, %s" % (vB, vB))
I("v_lshlrev_b32 %s, 4, %s" % (vF16, vN))
I("v_add3_u32 %s, %s, %s, %s" % (vF16, vF16, vA, vB))
I("v_lshlrev_b32 %s, 4, %s" % (vE, vS))
I("v_lshl_add_u32 %s, %s, 10, %s" % (vC, vN, vE))
I("v_lshl_add_u32 %s, %s, 13, %s" % (vD, vN, vE))
for r in range(8): I("v_mov_b32 %s, %s" % (V(XF + r), sOnes))
I("s_lshr_b32 %s, %s, 1" % (sA, sW)); I("s_lshl_b32 %s, %s, 3" % (sA, sA))
I("s_and_b32 %s, %s, 1" % (sB, sW)); I("s_lshl_b32 %s, %s, 1" % (sC, sB))
I("s_add_u32 %s, %s, %s" % (sE, sA, sC))
I("s_lshl_b32 %s, %s, 6" % (sA, sJ)); I("s_add_u32 %s, %s, %s" % (sA, sA, sE))
I("s_lshl_b32 %s, %s, 13" % (sA, sA)); I("s_lshl_b32 %s, %s, 8" % (sC, sH))
I("s_add_u32 %s, %s, %s" % (sD, sA, sC))
I("s_lshl_b32 %s, %s, 10" % (sB, sB))
I("s_lshl_b32 %s, %s, 7" % (sA, sJ))
I("s_mul_i32 %s, %s, 2112" % (sC, sW))
I("s_add_u32 m0, %s, %d" % (sC, R1))
I("s_add_u32 %s, %s, 8192" % (sC, sD))
k.lgkm(0)
stamp("kernarg")
I("buffer_load_dwordx4 %s, %s, %s, %s offen" % (V(ACC, 4), vL16, X, sB), tag="xs")
set_exec(0x0003000300030003)
I("buffer_load_dwordx4 %s, %s, %s, %s offen" % (V(XF, 4), vC, X, sA), tag="xf")
I("buffer_load_dwordx4 %s, %s, %s, %s offen offset:64" % (V(XF + 4, 4), vC, X, sA), tag="xf")
set_exec(-1)
I("buffer_load_dwordx4 %s, %s, %s offen nt lds" % (vF16, WQ, sD), tag="wq")
I("s_add_u32 m0, m0, 1056")
I("buffer_load_dwordx4 %s, %s, %s offen nt lds" % (vF16, WQ, sC), tag="wq")
I("s_load_dword %s, s[44:45], 0" % sT)
for srd, off in ((20, 32), (24, 40), (28, 56), (32, 64), (36, 72), (40, 80)):
    I("s_load_dwordx2 s[%d:%d], s[0:1], %d" % (srd, srd + 1, off))
I("s_and_b32 %s, %s, 3" % (sHG, sI))
I("s_lshr_b32 %s, %s, 2" % (sA, sI)); I("s_lshl_b32 %s, %s, 3" % (sTile, sX8)); I("s_add_u32 %s, %s, %s" % (sTile, sTile, sA))
I("s_lshl_b32 %s, %s, 17" % (sCKoff, sTile)); I("s_lshl_b32 %s, %s, 14" % (sA, sW)); I("s_add_u32 %s, %s, %s" % (sCKoff, sCKoff, sA))
I("s_mul_i32 %s, %s, %d" % (sCKm0, sW, 16*1056))
I("s_mov_b32 %s, 0" % sCKk)
I("s_cmp_ge_u32 %s, 4" % sW)
I("s_cbranch_scc1 L_p0_hi")
I("s_lshl_b32 %s, %s, 6" % (sA, sJ)); I("s_lshl_b32 %s, %s, 4" % (sB, sW)); I("s_add_u32 %s, %s, %s" % (sA, sA, sB))
I("s_lshl_b32 %s, %s, 13" % (sA, sA)); I("s_lshl_b32 %s, %s, 8" % (sB, sH)); I("s_add_u32 %s, %s, %s" % (sA, sA, sB))
for ks in range(4):
    I("buffer_load_dwordx4 %s, %s, %s, %s offen offset:%d nt" % (V(PV + 4*ks, 4), vD, WUK, sA, 64*ks), tag="wuk")
I("s_branch L_p0_end")
k.label("L_p0_hi")
ckv_group()
k.label("L_p0_end")
for srd in (20, 24, 28, 32, 36, 40):
    I("s_mov_b32 s%d, 0x%x" % (srd + 2, sizes[srd])); I("s_mov_b32 s%d, 0x20000" % (srd + 3))
I("v_lshrrev_b32 %s, 2, %s" % (vA, vL))
I("v_mul_u32_u24 %s, 1056, %s" % (vTr, vA))
I("v_and_b32 %s, 3, %s" % (vB, vL))
I("v_lshl_add_u32 %s, %s, 3, %s" % (vTr, vB, vTr))
I("v_lshl_add_u32 %s, %s, 9, %s" % (vPubN, vN, vE))
I("v_lshl_add_u32 %s, %s, 16, %s" % (vPubB, vN, vE))
I("v_lshrrev_b32 %s, 5, %s" % (vA, vL))
I("v_mul_u32_u24 %s, 288, %s" % (vQPw, vA))
I("v_and_b32 %s, 31, %s" % (vB, vL))
I("v_lshl_add_u32 %s, %s, 3, %s" % (vQPw, vB, vQPw))
I("v_add_u32 %s, %d, %s" % (vQPw, R2, vQPw))
I("v_mul_u32_u24 %s, 288, %s" % (vQPr, vN))
I("v_add_u32 %s, %s, %s" % (vQPr, vQPr, vE))
I("v_add_u32 %s, %d, %s" % (vQPr, R2, vQPr))
I("s_lshl_b32 %s, %s, 3" % (sGrp, sH)); I("s_add_u32 %s, %s, %s" % (sGrp, sGrp, sJ))
I("s_lshl_b32 %s, %s, 3" % (sFS, sG)); I("s_add_u32 %s, %s, %s" % (sFS, sFS, sX8))
I("v_cmp_lt_u32 %s, 7, %s" % (sHi, vN))
k.wait_vm("xs")
a, b = ACC + 4, ACC + 5
I("v_dot2_f32_bf16 %s, %s, %s, 0" % (V(a), V(ACC), V(ACC)))
I("v_dot2_f32_bf16 %s, %s, %s, 0" % (V(b), V(ACC), sOnes))
for r in range(1, 4):
    I("v_dot2_f32_bf16 %s, %s, %s, %s" % (V(a), V(ACC + r), V(ACC + r), V(a)))
    I("v_dot2_f32_bf16 %s, %s, %s, %s" % (V(b), V(ACC + r), sOnes, V(b)))
for sh in (8, 4, 2, 1):
    I("v_add_f32_dpp %s, %s, %s row_ror:%d%s" % (V(a), V(a), V(a), sh, DPP))
    I("v_add_f32_dpp %s, %s, %s row_ror:%d%s" % (V(b), V(b), V(b), sh, DPP))
I("v_permlane16_swap_b32 %s, %s" % (V(a), V(b)))
I("v_add_f32 %s, %s, %s" % (V(a), V(a), V(b)))
I("v_mov_b32 %s, %s" % (V(b), V(a)))
I("v_permlane32_swap_b32 %s, %s" % (V(a), V(b)))
I("v_add_f32 %s, %s, %s" % (V(a), V(a), V(b)))
I("v_mov_b32 %s, %s" % (V(b), V(a)))
I("v_permlane16_swap_b32 %s, %s" % (V(a), V(b)))
I("v_mul_f32 %s, 0xbb000000, %s" % (V(ACC + 6), V(b)))
I("v_mul_f32 %s, 0x3b000000, %s" % (V(a), V(a)))
I("v_fma_f32 %s, -%s, %s, %s" % (V(a), V(ACC + 6), V(ACC + 6), V(a)))
I("v_max_f32 %s, 0, %s" % (V(a), V(a)))
I("v_add_f32 %s, 0x3727c5ac, %s" % (V(a), V(a)))
I("v_rsq_f32 %s, %s" % (V(ACC + 7), V(a)))
I("s_and_b32 %s, %s, 1" % (sA, sW)); I("s_lshl_b32 %s, %s, 3" % (sA, sA)); I("s_add_u32 %s, %s, %d" % (sA, sA, ST))
I("v_mov_b32 %s, %s" % (vA, sA))
set_exec(1)
I("ds_write_b64 %s, %s" % (vA, V(ACC + 6, 2)))
set_exec(-1)
I("s_lshl_b32 %s, %s, 5" % (sA, sW)); I("s_add_u32 %s, %s, %d" % (sA, sA, R1))
I("v_add_u32 %s, %s, %s" % (vA, sA, vTr))
I("v_and_b32 %s, 1, %s" % (vB, vN)); I("v_lshlrev_b32 %s, 3, %s" % (vB, vB)); I("v_add_u32 %s, %d, %s" % (vB, ST, vB))
I("s_mul_i32 %s, %s, 576" % (sA, sW))
I("v_add_u32 %s, %s, %s" % (vF, sA, vQPw))
k.wait_vm("wq", "xf", lgkm=0)
I("s_barrier")
stamp("B1")
WQF = PV + 16
for z in range(4):
    I("ds_read_b64_tr_b16 %s, %s offset:%d" % (V(WQF + 2*z, 2), vA, 256*z))
I("ds_read_b64 %s, %s" % (V(18, 2), vB))
I("s_add_u32 %s, %s, 1" % (sT, sT))
I("s_not_b32 %s, %s" % (sT2, sT))
I("v_mov_b32 %s, %s" % (V(GR), sT))
I("v_mov_b32 %s, %s" % (V(GR + 1), sT2))
I("s_lshl_b32 %s, %s, 10" % (sA, sGrp)); I("s_lshl_b32 %s, %s, 6" % (sB, sW)); I("s_add_u32 %s, %s, %s" % (sA, sA, sB))
I("s_add_u32 %s, %s, 0x%x" % (sA, sA, WS_H0))
def a0_like(frag, soff):
    k.lgkm(0)
    mfma(ACC, frag, XF, "0")
    mfma(ACC, frag + 4, XF + 4, ACC)
    for r in range(4):
        I("v_fmac_f32_dpp %s, %s, %s quad_perm:[2,2,2,2]%s" % (V(ACC + r), V(ACC + r), vNM, DPP))
    for r in range(4):
        I("v_mul_f32 %s, %s, %s" % (V(ACC + r), V(ACC + r), vRS))
    I("v_cvt_pk_bf16_f32 %s, %s, %s" % (V(GR + 2), V(ACC), V(ACC + 1)))
    I("v_cvt_pk_bf16_f32 %s, %s, %s" % (V(GR + 3), V(ACC + 2), V(ACC + 3)))
    set_exec(0x0003000300030003)
    I("buffer_store_dwordx4 %s, %s, %s, %s offen sc1" % (V(GR, 4), vPubN, WS, soff), tag="st")
    set_exec(-1)
a0_like(WQF, sA)
stamp("A0pub")
I("s_lshl_b32 %s, %s, 3" % (sC, sH)); I("s_add_u32 %s, %s, %s" % (sC, sC, sW)); I("s_lshl_b32 %s, %s, 10" % (sC, sC))
I("s_add_u32 %s, %s, 0x%x" % (sC, sC, WS_H0))
def ld_h0(tag): I("buffer_load_dwordx4 %s, %s, %s, %s offen sc1" % (V(ACC + 4, 4), vL16, WS, sC), tag=tag)
gather("h0", ld_h0, check64([ACC + 4]), after_first=ckv_group)
I("ds_write_b64 %s, %s" % (vF, V(ACC + 6, 2)))
k.lgkm(0)
I("s_barrier")
stamp("B2")
I("s_cmp_ge_u32 %s, 4" % sW)
I("s_cbranch_scc1 L_a1_end")
QPF = PV + 24
for ks in range(4):
    I("ds_read_b128 %s, %s offset:%d" % (V(QPF + 4*ks, 4), vQPr, 64*ks))
I("s_lshl_b32 %s, %s, 11" % (sC, sH)); I("s_lshl_b32 %s, %s, 8" % (sB, sJ)); I("s_add_u32 %s, %s, %s" % (sC, sC, sB))
I("s_lshl_b32 %s, %s, 6" % (sB, sW)); I("s_add_u32 %s, %s, %s" % (sC, sC, sB)); I("s_add_u32 %s, %s, 0x%x" % (sC, sC, WS_H1))
k.wait_vm("wuk")
def red_j():
    for sh in (8, 4, 2):
        for r in range(4):
            I("v_add_f32_dpp %s, %s, %s row_ror:%d%s" % (V(ACC + r), V(ACC + r), V(ACC + r), sh, DPP))
for ks in range(4):
    k.lgkm(3 - ks)
    mfma(ACC, PV + 4*ks, QPF + 4*ks, "0" if ks == 0 else ACC)
red_j()
import math, struct
SCALE = struct.unpack("<I", struct.pack("<f", math.log2(math.e) / math.sqrt(128.0)))[0]
for r in range(4): I("v_mul_f32 %s, 0x%08x, %s" % (V(ACC + r), SCALE, V(ACC + r)))
I("v_cvt_pk_bf16_f32 %s, %s, %s" % (V(GR + 2), V(ACC), V(ACC + 1)))
I("v_cvt_pk_bf16_f32 %s, %s, %s" % (V(GR + 3), V(ACC + 2), V(ACC + 3)))
set_exec(0x0003000300030003)
I("buffer_store_dwordx4 %s, %s, %s, %s offen sc1" % (V(GR, 4), vPubB, WS, sC), tag="st")
set_exec(-1)
ckv_group()
k.label("L_a1_end")
stamp("A1pub")
ckv_group()
ckv_group()
I("v_mul_u32_u24 %s, 1056, %s" % (vA, vN))
I("v_add3_u32 %s, %s, %s, %s" % (vA, vA, vE, sCKm0))
I("s_mul_i32 %s, %s, 544" % (sA, sW)); I("s_add_u32 %s, %s, %d" % (sA, sA, Q_))
I("v_lshl_add_u32 %s, %s, 3, %s" % (vB, vL, sA))
I("v_mul_u32_u24 %s, 544, %s" % (vC, vN)); I("v_add_u32 %s, %s, %s" % (vC, vC, vE)); I("v_add_u32 %s, %d, %s" % (vC, Q_, vC))
I("s_lshl_b32 %s, %s, 7" % (sA, sW))
I("v_add_u32 %s, %s, %s" % (vD, sA, vTr))
I("v_add_u32 %s, %d, %s" % (vF, 64*1056, vD))
I("s_lshr_b32 %s, %s, 5" % (sC, sTile)); I("s_lshl_b32 %s, %s, 16" % (sC, sC))
I("s_lshl_b32 %s, %s, 3" % (sA, sHG)); I("s_add_u32 %s, %s, %s" % (sA, sA, sW)); I("s_lshl_b32 %s, %s, 11" % (sA, sA))
I("s_add_u32 %s, %s, %s" % (sC, sC, sA)); I("s_add_u32 %s, %s, 0x%x" % (sC, sC, WS_H1))
vWO, vRow, vGU, vWD = V(TMP), V(TMP + 1), V(TMP + 2), V(TMP + 3)
I("v_bfe_u32 %s, %s, 3, 1" % (vWO, vL)); I("v_lshlrev_b32 %s, 2, %s" % (vRow, vWO))
I("v_lshl_add_u32 %s, %s, 5, %s" % (vWO, vS, vRow))
I("v_and_b32 %s, 7, %s" % (vG, vL)); I("v_lshlrev_b32 %s, 4, %s" % (vG, vG))
I("v_lshl_add_u32 %s, %s, 10, %s" % (vWO, vWO, vG))
I("v_and_b32 %s, 1, %s" % (vGU, vS)); I("v_lshl_add_u32 %s, %s, 5, %s" % (vRow, vGU, vRow))
I("v_lshrrev_b32 %s, 5, %s" % (vGU, vL)); I("v_add_u32 %s, %s, %s" % (vRow, vRow, vGU))
I("v_mul_u32_u24 %s, 2752, %s" % (vGU, vRow)); I("v_add_u32 %s, %s, %s" % (vGU, vGU, vG))
I("v_lshl_add_u32 %s, %s, 10, %s" % (vWD, vRow, vG))
def late_loads():
    I("s_lshl_b32 %s, %s, 6" % (sA, sJ)); I("s_add_u32 %s, %s, %s" % (sA, sA, sE)); I("s_mul_i32 %s, %s, 2752" % (sA, sA))
    I("s_lshl_b32 %s, %s, 7" % (sB, sFS)); I("s_add_u32 %s, %s, %s" % (sA, sA, sB))
    I("s_cmp_lt_u32 %s, 22" % sFS)
    I("s_cselect_b32 %s, %s, 0x7f000000" % (sA, sA))
    I("buffer_load_dwordx4 %s, %s, %s, %s offen nt" % (V(LATE + 16, 4), vGU, GA, sA), tag="late")
    I("buffer_load_dwordx4 %s, %s, %s, %s offen nt" % (V(LATE + 20, 4), vGU, UP, sA), tag="late")
    I("s_add_u32 %s, %s, 8192" % (sA, sD))
    I("buffer_load_dwordx4 %s, %s, %s, %s offen nt" % (V(LATE, 4), vF16, WUV, sD), tag="late")
    I("buffer_load_dwordx4 %s, %s, %s, %s offen nt" % (V(LATE + 4, 4), vF16, WUV, sA), tag="late")
    I("s_lshl_b32 %s, %s, 6" % (sA, sFS)); I("s_add_u32 %s, %s, %s" % (sA, sA, sE)); I("s_lshl_b32 %s, %s, 10" % (sA, sA))
    I("s_lshl_b32 %s, %s, 7" % (sB, sJ)); I("s_add_u32 %s, %s, %s" % (sA, sA, sB))
    I("buffer_load_dwordx4 %s, %s, %s, %s offen nt" % (V(LATE + 24, 4), vWD, DN, sA), tag="late")
    I("s_lshl_b32 %s, %s, 7" % (sA, sH)); I("s_add_u32 %s, %s, %s" % (sA, sA, sE)); I("s_lshl_b32 %s, %s, 10" % (sA, sA))
    I("s_add_u32 %s, %s, %s" % (sA, sA, sB))
    I("buffer_load_dwordx4 %s, %s, %s, %s offen nt" % (V(LATE + 8, 4), vWO, WO, sA), tag="late")
    I("buffer_load_dwordx4 %s, %s, %s, %s offen offset:1024 nt" % (V(LATE + 12, 4), vWO, WO, sA), tag="late")
k.wait_vm("ckv")
stamp("ckv")
def ld_h1(tag):
    for u in range(2):
        I("buffer_load_dwordx4 %s, %s, %s, %s offen offset:%d sc1" % (V(ACC + 4*u, 4), vL16, WS, sC, 1024*u), tag=tag)
def after_h1():
    late_loads()
    for kk in range(16):
        I("ds_read_b128 %s, %s offset:%d" % (V(QK + 4*kk, 4), vA, 64*kk))
gather("h1", ld_h1, check64([ACC, ACC + 4]), after_first=after_h1)
I("ds_write_b64 %s, %s" % (vB, V(ACC + 2, 2)))
I("ds_write_b64 %s, %s offset:%d" % (vB, V(ACC + 6, 2), 8*544))
k.lgkm(0)
I("s_barrier")
stamp("B3")
for ks in range(8):
    I("ds_read_b128 %s, %s offset:%d" % (V(QB + 4*ks, 4), vC, 64*ks))
def pv_reads(kp):
    for t in range(4):
        for q in range(2):
            base = vD if kp < 2 else vF
            I("ds_read_b64_tr_b16 %s, %s offset:%d" % (V(PV + 16*kp + 4*t + 2*q, 2), base, (32*(kp & 1) + 16*q)*1056 + 32*t))
D1, D2 = ACC, ACC + 4
I("v_and_b32 %s, 7, %s" % (V(ACC + 8), vN))
I("v_lshlrev_b32 %s, 5, %s" % (vB, V(ACC + 8))); I("v_add_u32 %s, %d, %s" % (vB, MX, vB))
I("s_lshl_b32 %s, %s, 2" % (sA, sW))
I("v_add_u32 %s, %s, %s" % (vA, sA, vB))
I("v_mul_u32_u24 %s, 288, %s" % (V(ACC + 9), V(ACC + 8))); I("v_add_u32 %s, %s, %s" % (V(ACC + 9), V(ACC + 9), vE))
I("v_add_u32 %s, %d, %s" % (V(ACC + 9), P_, V(ACC + 9)))
I("s_lshr_b32 %s, %s, 1" % (sA, sW)); I("s_lshl_b32 %s, %s, 6" % (sA, sA)); I("s_and_b32 %s, %s, 1" % (sB, sW)); I("s_lshl_b32 %s, %s, 3" % (sB, sB))
I("s_add_u32 %s, %s, %s" % (sA, sA, sB))
I("v_add_u32 %s, %s, %s" % (vG, sA, V(ACC + 9)))
for ks in range(8):
    k.lgkm(7 - ks)
    mfma(D1, QK + 4*ks, QB + 4*ks, "0" if ks == 0 else D1)
    mfma(D2, QK + 32 + 4*ks, QB + 4*ks, "0" if ks == 0 else D2)
pv_reads(0)
S = ACC + 12
for r in range(4): I("v_cndmask_b32 %s, %s, %s, %s" % (V(S + r), V(D1 + r), V(D2 + r), sHi))
for r in range(4): I("v_add_f32_dpp %s, %s, %s row_ror:8%s" % (V(S + r), V(S + r), V(S + r), DPP))
mx, mt = ACC + 10, ACC + 11
I("v_max3_f32 %s, %s, %s, %s" % (V(mx), V(S), V(S + 1), V(S + 2)))
I("v_max_f32 %s, %s, %s" % (V(mx), V(mx), V(S + 3)))
for sw in ("16", "32"):
    I("v_mov_b32 %s, %s" % (V(mt), V(mx)))
    I("v_permlane%s_swap_b32 %s, %s" % (sw, V(mx), V(mt)))
    I("v_max_f32 %s, %s, %s" % (V(mx), V(mx), V(mt)))
set_exec(0xff)
I("ds_write_b32 %s, %s" % (vA, V(mx)))
set_exec(-1)
k.lgkm(0)
I("s_barrier")
stamp("B4a")
I("ds_read_b128 %s, %s" % (V(ACC, 4), vB))
I("ds_read_b128 %s, %s offset:16" % (V(ACC + 4, 4), vB))
pv_reads(1)
k.lgkm(8)
I("v_max3_f32 %s, %s, %s, %s" % (V(mx), V(ACC), V(ACC + 1), V(ACC + 2)))
I("v_max3_f32 %s, %s, %s, %s" % (V(mt), V(ACC + 3), V(ACC + 4), V(ACC + 5)))
I("v_max3_f32 %s, %s, %s, %s" % (V(mx), V(mx), V(ACC + 6), V(ACC + 7)))
I("v_max_f32 %s, %s, %s" % (V(mx), V(mx), V(mt)))
for r in range(4): I("v_sub_f32 %s, %s, %s" % (V(S + r), V(S + r), V(mx)))
for r in range(4): I("v_exp_f32 %s, %s" % (V(S + r), V(S + r)))
I("v_cvt_pk_bf16_f32 %s, %s, %s" % (V(ACC), V(S), V(S + 1)))
I("v_cvt_pk_bf16_f32 %s, %s, %s" % (V(ACC + 1), V(S + 2), V(S + 3)))
set_exec(0x00ff00ff00ff00ff)
I("ds_write_b64 %s, %s" % (vG, V(ACC, 2)))
set_exec(-1)
k.lgkm(0)
I("s_barrier")
stamp("B4b")
PF = QB
for kp in range(4):
    I("ds_read_b128 %s, %s offset:%d" % (V(PF + 4*kp, 4), V(ACC + 9), 64*kp))
pv_reads(2)
I("v_lshrrev_b32 %s, 3, %s" % (vA, vN)); I("v_lshl_add_u32 %s, %s, 6, %s" % (vA, vA, vE))
I("v_lshl_add_u32 %s, %s, 17, %s" % (vA, V(ACC + 8), vA))
I("s_lshl_b32 %s, %s, 6" % (sC, sHG)); I("s_add_u32 %s, %s, %s" % (sC, sC, sW)); I("s_lshl_b32 %s, %s, 14" % (sC, sC))
I("s_lshl_b32 %s, %s, 8" % (sA, sTile)); I("s_add_u32 %s, %s, %s" % (sC, sC, sA)); I("s_add_u32 %s, %s, 0x%x" % (sC, sC, WS_H2))
O = QB + 16
G0, G1 = ACC, ACC + 4
lsum = ACC + 16
k.lgkm(8)
pv_reads(3)
for kp in range(2):
    for t in range(4): mfma(O + 4*t, PV + 16*kp + 4*t, PF + 4*kp, "0" if kp == 0 else O + 4*t)
I("v_dot2_f32_bf16 %s, %s, %s, 0" % (V(lsum), V(PF), sOnes))
for r in range(1, 16): I("v_dot2_f32_bf16 %s, %s, %s, %s" % (V(lsum), V(PF + r), sOnes, V(lsum)))
k.lgkm(8)
for t in range(4): mfma(O + 4*t, PV + 32 + 4*t, PF + 8, O + 4*t)
for sw in ("16", "32"):
    I("v_mov_b32 %s, %s" % (V(mt), V(lsum)))
    I("v_permlane%s_swap_b32 %s, %s" % (sw, V(lsum), V(mt)))
    I("v_add_f32 %s, %s, %s" % (V(lsum), V(lsum), V(mt)))
k.lgkm(0)
for t in range(4): mfma(O + 4*t, PV + 48 + 4*t, PF + 12, O + 4*t)
I("v_mov_b32 %s, %s" % (V(G0 + 2), V(mx))); I("v_mov_b32 %s, %s" % (V(G0 + 3), sT))
I("v_mov_b32 %s, %s" % (V(G1 + 2), V(lsum))); I("v_mov_b32 %s, %s" % (V(G1 + 3), sT))
for u, G in ((0, G0), (1, G1)):
    for r in range(4): I("v_cndmask_b32 %s, %s, %s, %s" % (V(S + r), V(O + 8*u + r), V(O + 8*u + 4 + r), sHi))
    I("v_cvt_pk_bf16_f32 %s, %s, %s" % (V(G), V(S), V(S + 1)))
    I("v_cvt_pk_bf16_f32 %s, %s, %s" % (V(G + 1), V(S + 2), V(S + 3)))
    I("buffer_store_dwordx4 %s, %s, %s, %s offen offset:%d sc1" % (V(G, 4), vA, WS, sC, 128*u), tag="st2")
stamp("Bpub")
I("s_barrier")
I("s_mul_i32 %s, %s, 2112" % (sA, sW))
I("v_add_u32 %s, %s, %s" % (vA, sA, vL16))
I("v_lshrrev_b32 %s, 5, %s" % (vG, vL))
I("v_mul_u32_u24 %s, 1056, %s" % (vB, vG)); I("v_add_u32 %s, %s, %s" % (vB, sA, vB))
I("v_bfe_u32 %s, %s, 3, 2" % (vD, vL))
I("v_lshl_add_u32 %s, %s, 8, %s" % (vB, vD, vB))
I("v_and_b32 %s, 7, %s" % (vF, vL))
I("v_lshl_add_u32 %s, %s, 4, %s" % (vB, vF, vB))
I("s_mul_i32 %s, %s, 1088" % (sA, sW))
I("v_mul_u32_u24 %s, 544, %s" % (vC, vG)); I("v_add_u32 %s, %s, %s" % (vC, sA, vC))
I("v_lshl_add_u32 %s, %s, 7, %s" % (vC, vD, vC))
I("v_lshl_add_u32 %s, %s, 4, %s" % (vC, vF, vC))
k.wait_vm("late")
I("ds_write_b128 %s, %s offset:%d" % (vB, V(LATE + 16, 4), GUI))
I("ds_write_b128 %s, %s offset:%d" % (vB, V(LATE + 20, 4), GUI + 128))
I("ds_write_b128 %s, %s offset:%d" % (vA, V(LATE, 4), WUVI))
I("ds_write_b128 %s, %s offset:%d" % (vA, V(LATE + 4, 4), WUVI + 1056))
I("ds_write_b128 %s, %s offset:%d" % (vA, V(LATE + 8, 4), WOI))
I("ds_write_b128 %s, %s offset:%d" % (vA, V(LATE + 12, 4), WOI + 1056))
I("ds_write_b128 %s, %s offset:%d" % (vC, V(LATE + 24, 4), WDI))
I("s_lshl_b32 %s, %s, 5" % (sA, sW))
I("v_add_u32 %s, %s, %s" % (vA, sA, vTr))
I("v_lshrrev_b32 %s, 2, %s" % (vB, vL)); I("v_mul_u32_u24 %s, 544, %s" % (vB, vB))
I("v_and_b32 %s, 3, %s" % (vC, vL)); I("v_lshl_add_u32 %s, %s, 3, %s" % (vB, vC, vB)); I("v_add_u32 %s, %s, %s" % (vB, sA, vB))
k.lgkm(0)
I("s_barrier")
stamp("B5")
GUF = QK; UVF = QK + 8; WOF = QK + 16; WDF = QK + 32; HBF = QK + 40
for z in range(4): I("ds_read_b64_tr_b16 %s, %s offset:%d" % (V(GUF + 2*z, 2), vA, GUI + 256*z))
for z in range(4): I("ds_read_b64_tr_b16 %s, %s offset:%d" % (V(UVF + 2*z, 2), vA, WUVI + 256*z))
I("s_cmp_ge_u32 %s, 4" % sW)
I("s_cbranch_scc1 L_lf_end")
for z in range(8): I("ds_read_b64_tr_b16 %s, %s offset:%d" % (V(WOF + 2*z, 2), vA, WOI + 128*z))
for z in range(4): I("ds_read_b64_tr_b16 %s, %s offset:%d" % (V(WDF + 2*z, 2), vB, WDI + 128*z))
for r in range(8): I("v_mov_b32 %s, 0" % V(HBF + r))
k.label("L_lf_end")
I("s_cmp_ge_u32 %s, 22" % sFS)
I("s_cbranch_scc1 L_f1_end")
I("s_lshl_b32 %s, %s, 3" % (sA, sFS)); I("s_add_u32 %s, %s, %s" % (sA, sA, sJ)); I("s_lshl_b32 %s, %s, 10" % (sA, sA))
I("s_lshl_b32 %s, %s, 6" % (sB, sW)); I("s_add_u32 %s, %s, %s" % (sA, sA, sB)); I("s_add_u32 %s, %s, 0x%x" % (sA, sA, WS_HF))
a0_like(GUF, sA)
k.label("L_f1_end")
I("v_lshrrev_b32 %s, 3, %s" % (vG, vL)); I("v_lshlrev_b32 %s, 8, %s" % (vA, vG)); I("v_lshl_add_u32 %s, %s, 4, %s" % (vA, vF, vA))
I("s_lshl_b32 %s, %s, 14" % (sC, sGrp)); I("s_lshl_b32 %s, %s, 11" % (sA, sW)); I("s_add_u32 %s, %s, %s" % (sC, sC, sA))
I("s_add_u32 %s, %s, 0x%x" % (sC, sC, WS_H2))
I("v_and_b32 %s, 1, %s" % (vB, vS)); I("v_lshlrev_b32 %s, 6, %s" % (vB, vB)); I("v_lshl_add_u32 %s, %s, 3, %s" % (vB, vF, vB))
I("v_lshrrev_b32 %s, 5, %s" % (vC, vL)); I("v_lshl_add_u32 %s, %s, 2, %s" % (vB, vC, vB))
I("s_mul_i32 %s, %s, 160" % (sA, sW)); I("s_add_u32 %s, %s, %d" % (sA, sA, OW)); I("v_add_u32 %s, %s, %s" % (vB, sA, vB))
I("s_lshl_b32 %s, %s, 3" % (sA, sW)); I("s_add_u32 %s, %s, %d" % (sA, sA, ST2)); I("v_mov_b32 %s, %s" % (vC, sA))
I("v_mul_u32_u24 %s, 160, %s" % (vD, vF)); I("v_add_u32 %s, %s, %s" % (vD, vD, vE)); I("v_add_u32 %s, %d, %s" % (vD, OW, vD))
I("v_lshlrev_b32 %s, 3, %s" % (V(TMP), vF)); I("v_add_u32 %s, %d, %s" % (V(TMP), ST2, V(TMP)))
I("v_lshrrev_b32 %s, 2, %s" % (V(TMP + 1), vN)); I("v_lshl_add_u32 %s, %s, 9, %s" % (V(TMP + 1), V(TMP + 1), vE))
k.wait_vm("st2")
stamp("st2ack")
H = PV
def ld_h2(tag):
    for u in range(2):
        I("buffer_load_dwordx4 %s, %s, %s, %s offen offset:%d sc1" % (V(H + 4*u, 4), vA, WS, sC, 128*u), tag=tag)
def chk_h2():
    I("v_cmp_ne_u32 vcc, %s, %s" % (sT, V(H + 3)))
    I("v_cmp_ne_u32 %s, %s, %s" % (sM, sT, V(H + 7)))
    I("s_or_b64 vcc, vcc, %s" % sM)
gather("h2", ld_h2, chk_h2)
stamp("H2")
mw, wt, tt = ACC + 8, ACC + 9, ACC + 10
Z = ACC
I("v_max_f32_dpp %s, %s, %s row_ror:8%s" % (V(mw), V(H + 2), V(H + 2), DPP))
for u in range(2):
    I("v_lshlrev_b32 %s, 16, %s" % (V(Z + 4*u), V(H + 4*u)))
    I("v_and_b32 %s, 0xffff0000, %s" % (V(Z + 4*u + 1), V(H + 4*u)))
for n_, sw in enumerate(("16", "32")):
    I("v_mov_b32 %s, %s" % (V(tt), V(mw)))
    I("v_lshlrev_b32 %s, 16, %s" % (V(Z + 4*n_ + 2), V(H + 4*n_ + 1)))
    I("v_and_b32 %s, 0xffff0000, %s" % (V(Z + 4*n_ + 3), V(H + 4*n_ + 1)))
    I("v_permlane%s_swap_b32 %s, %s" % (sw, V(mw), V(tt)))
    I("v_max_f32 %s, %s, %s" % (V(mw), V(mw), V(tt)))
I("v_sub_f32 %s, %s, %s" % (V(wt), V(H + 2), V(mw)))
I("v_exp_f32 %s, %s" % (V(wt), V(wt)))
for r in range(8): I("v_mul_f32 %s, %s, %s" % (V(Z + r), V(Z + r), V(wt)))
lw = mw + 1
I("v_mul_f32 %s, %s, %s" % (V(lw), V(H + 6), V(wt)))
for r in range(4): I("v_permlane16_swap_b32 %s, %s" % (V(Z + r), V(Z + 4 + r)))
for r in range(4): I("v_add_f32 %s, %s, %s" % (V(Z + r), V(Z + r), V(Z + 4 + r)))
I("v_add_f32_dpp %s, %s, %s row_ror:8%s" % (V(lw), V(lw), V(lw), DPP))
for r in range(2): I("v_permlane32_swap_b32 %s, %s" % (V(Z + r), V(Z + 2 + r)))
I("v_mov_b32 %s, %s" % (V(tt), V(lw)))
for r in range(2): I("v_add_f32 %s, %s, %s" % (V(Z + r), V(Z + r), V(Z + 2 + r)))
I("v_permlane16_swap_b32 %s, %s" % (V(lw), V(tt)))
for r in range(2): I("v_add_f32_dpp %s, %s, %s row_ror:8%s" % (V(Z + r), V(Z + r), V(Z + r), DPP))
I("v_add_f32 %s, %s, %s" % (V(lw), V(lw), V(tt)))
I("v_cvt_pk_bf16_f32 %s, %s, %s" % (V(Z), V(Z), V(Z + 1)))
I("v_mov_b32 %s, %s" % (V(tt), V(lw)))
set_exec(0x00ff00ff00ff00ff)
I("ds_write_b32 %s, %s" % (vB, V(Z)))
set_exec(-1)
I("v_permlane32_swap_b32 %s, %s" % (V(lw), V(tt)))
I("v_add_f32 %s, %s, %s" % (V(lw), V(lw), V(tt)))
set_exec(1)
I("ds_write_b64 %s, %s" % (vC, V(mw, 2)))
set_exec(-1)
k.lgkm(0)
I("s_barrier")
OF = PV + 8
I("ds_read_b64 %s, %s" % (V(mw, 2), V(TMP)))
I("ds_read_b128 %s, %s" % (V(OF, 4), vD))
I("ds_read_b128 %s, %s offset:64" % (V(OF + 4, 4), vD))
I("s_lshl_b32 %s, %s, 10" % (sC, sGrp)); I("s_lshl_b32 %s, %s, 6" % (sA, sW)); I("s_add_u32 %s, %s, %s" % (sC, sC, sA))
I("s_add_u32 %s, %s, 0x%x" % (sC, sC, WS_H25))
k.lgkm(2)
mb_ = ACC + 11; e_ = ACC + 12
I("v_max_f32_dpp %s, %s, %s quad_perm:[1,0,3,2]%s" % (V(mb_), V(mw), V(mw), DPP))
I("v_max_f32_dpp %s, %s, %s quad_perm:[2,3,0,1]%s" % (V(mb_), V(mb_), V(mb_), DPP))
k.lgkm(0)
mfma(ACC, UVF, OF, "0")
mfma(ACC, UVF + 4, OF + 4, ACC)
I("v_sub_f32 %s, %s, %s" % (V(e_), V(mw), V(mb_)))
I("v_exp_f32 %s, %s" % (V(e_), V(e_)))
I("v_mul_f32 %s, %s, %s" % (V(lw), V(lw), V(e_)))
I("v_add_f32_dpp %s, %s, %s quad_perm:[1,0,3,2]%s" % (V(lw), V(lw), V(lw), DPP))
I("v_add_f32_dpp %s, %s, %s quad_perm:[2,3,0,1]%s" % (V(lw), V(lw), V(lw), DPP))
I("v_rcp_f32 %s, %s" % (V(lw), V(lw)))
I("v_mul_f32 %s, %s, %s" % (V(e_), V(e_), V(lw)))
for r in range(4): I("v_mul_f32 %s, %s, %s" % (V(ACC + r), V(ACC + r), V(e_)))
for qp in ("[1,0,3,2]", "[2,3,0,1]"):
    for r in range(4): I("v_add_f32_dpp %s, %s, %s quad_perm:%s%s" % (V(ACC + r), V(ACC + r), V(ACC + r), qp, DPP))
I("v_cvt_pk_bf16_f32 %s, %s, %s" % (V(GR + 2), V(ACC), V(ACC + 1)))
I("v_cvt_pk_bf16_f32 %s, %s, %s" % (V(GR + 3), V(ACC + 2), V(ACC + 3)))
set_exec(0x0011001100110011)
I("buffer_store_dwordx4 %s, %s, %s, %s offen sc1" % (V(GR, 4), V(TMP + 1), WS, sC), tag="st")
set_exec(-1)
stamp("Cpub")
I("s_cmp_ge_u32 %s, 4" % sW)
I("s_cbranch_scc1 L_f2")
I("s_lshl_b32 %s, %s, 13" % (sC, sH)); I("s_lshl_b32 %s, %s, 11" % (sA, sW)); I("s_add_u32 %s, %s, %s" % (sC, sC, sA))
I("s_add_u32 %s, %s, 0x%x" % (sC, sC, WS_H25))
I("s_mul_i32 %s, %s, 1152" % (sA, sW))
I("v_add_u32 %s, %s, %s" % (vA, sA, vQPw))
def ld_h25(tag):
    for u in range(2):
        I("buffer_load_dwordx4 %s, %s, %s, %s offen offset:%d sc1" % (V(H + 4*u, 4), vL16, WS, sC, 1024*u), tag=tag)
gather("h25", ld_h25, check64([H, H + 4]))
I("ds_write_b64 %s, %s" % (vA, V(H + 2, 2)))
I("ds_write_b64 %s, %s offset:576" % (vA, V(H + 6, 2)))
I("s_branch L_b7")
k.label("L_f2")
I("s_cmp_ge_u32 %s, 22" % sFS)
I("s_cbranch_scc1 L_b7")
I("v_lshlrev_b32 %s, 10, %s" % (vA, vF)); I("v_lshl_add_u32 %s, %s, 4, %s" % (vA, vG, vA))
I("s_lshl_b32 %s, %s, 13" % (sC, sFS)); I("s_bfe_u32 %s, %s, 0x10001" % (sA, sW)); I("s_lshl_b32 %s, %s, 9" % (sB, sA))
I("s_add_u32 %s, %s, %s" % (sC, sC, sB)); I("s_and_b32 %s, %s, 1" % (sB, sW)); I("s_lshl_b32 %s, %s, 7" % (sD, sB))
I("s_add_u32 %s, %s, %s" % (sC, sC, sD)); I("s_add_u32 %s, %s, 0x%x" % (sC, sC, WS_HF))
I("s_mul_i32 %s, %s, 160" % (sA, sA)); I("s_lshl_b32 %s, %s, 6" % (sB, sB)); I("s_add_u32 %s, %s, %s" % (sA, sA, sB)); I("s_add_u32 %s, %s, %d" % (sA, sA, HB))
I("v_lshl_add_u32 %s, %s, 3, %s" % (vB, vG, sA))
def ld_hf(tag):
    for u in range(2):
        I("buffer_load_dwordx4 %s, %s, %s, %s offen offset:%d sc1" % (V(H + 4*u, 4), vA, WS, sC, 256*u), tag=tag)
gather("hf", ld_hf, check64([H, H + 4]))
for u in range(2):
    for p in range(2):
        I("v_lshlrev_b32 %s, 16, %s" % (V(Z + 4*u + 2*p), V(H + 4*u + 2 + p)))
        I("v_and_b32 %s, 0xffff0000, %s" % (V(Z + 4*u + 2*p + 1), V(H + 4*u + 2 + p)))
for ctl in ("quad_perm:[1,0,3,2]", "quad_perm:[2,3,0,1]", "row_half_mirror"):
    for r in range(8): I("v_add_f32_dpp %s, %s, %s %s%s" % (V(Z + r), V(Z + r), V(Z + r), ctl, DPP))
for r in range(4): I("v_mul_f32 %s, 0xbfb8aa3b, %s" % (V(Z + r), V(Z + r)))
for r in range(4): I("v_exp_f32 %s, %s" % (V(Z + r), V(Z + r)))
for r in range(4): I("v_add_f32 %s, 1.0, %s" % (V(Z + r), V(Z + r)))
for r in range(4): I("v_rcp_f32 %s, %s" % (V(Z + r), V(Z + r)))
for r in range(4): I("v_mul_f32 %s, %s, %s" % (V(Z + r), V(Z + r), V(Z + 4 + r)))
I("v_cvt_pk_bf16_f32 %s, %s, %s" % (V(Z), V(Z), V(Z + 1)))
I("v_cvt_pk_bf16_f32 %s, %s, %s" % (V(Z + 1), V(Z + 2), V(Z + 3)))
set_exec(0x0101010101010101)
I("ds_write_b64 %s, %s" % (vB, V(Z, 2)))
set_exec(-1)
k.label("L_b7")
k.lgkm(0)
I("s_barrier")
stamp("B7")
I("s_cmp_ge_u32 %s, 4" % sW)
I("s_cbranch_scc1 L_fin")
CPF = PV + 16
for ks in range(4):
    I("ds_read_b128 %s, %s offset:%d" % (V(CPF + 4*ks, 4), vQPr, 64*ks))
I("s_cmp_ge_u32 %s, 22" % sFS)
I("s_cbranch_scc1 L_d_nof")
I("v_mul_u32_u24 %s, 160, %s" % (vA, vN)); I("v_add_u32 %s, %s, %s" % (vA, vA, vE)); I("v_add_u32 %s, %d, %s" % (vA, HB, vA))
set_exec(0x0003000300030003)
I("ds_read_b128 %s, %s" % (V(HBF, 4), vA))
I("ds_read_b128 %s, %s offset:64" % (V(HBF + 4, 4), vA))
set_exec(-1)
k.label("L_d_nof")
I("s_lshl_b32 %s, %s, 13" % (sC, sJ)); I("s_lshr_b32 %s, %s, 1" % (sA, sW)); I("s_lshl_b32 %s, %s, 12" % (sA, sA)); I("s_add_u32 %s, %s, %s" % (sC, sC, sA))
I("s_lshl_b32 %s, %s, 7" % (sA, sH)); I("s_add_u32 %s, %s, %s" % (sC, sC, sA))
I("s_and_b32 %s, %s, 1" % (sA, sW)); I("s_lshl_b32 %s, %s, 6" % (sA, sA)); I("s_add_u32 %s, %s, %s" % (sC, sC, sA))
I("s_add_u32 %s, %s, 0x%x" % (sC, sC, WS_H3))
k.lgkm(0)
for ks in range(4): mfma(ACC, WOF + 4*ks, CPF + 4*ks, "0" if ks == 0 else ACC)
for ks in range(2): mfma(ACC, WDF + 4*ks, HBF + 4*ks, ACC)
red_j()
I("v_cvt_pk_bf16_f32 %s, %s, %s" % (V(GR + 2), V(ACC), V(ACC + 1)))
I("v_cvt_pk_bf16_f32 %s, %s, %s" % (V(GR + 3), V(ACC + 2), V(ACC + 3)))
set_exec(0x0003000300030003)
I("buffer_store_dwordx4 %s, %s, %s, %s offen sc1" % (V(GR, 4), vPubB, WS, sC), tag="st")
set_exec(-1)
I("s_branch L_OUT")
k.label("L_fin")
I("s_cmp_lg_u32 %s, 4" % sW)
I("s_cbranch_scc1 L_OUT")
I("s_cmp_ge_u32 s2, 32")
I("s_cbranch_scc1 L_OUT")
I("v_lshl_add_u32 %s, %s, 2, %s" % (vA, vF, vS))
I("v_lshlrev_b32 %s, 1, %s" % (vA, vA))
I("s_lshl_b32 %s, s2, 6" % sD)
I("buffer_load_ushort %s, %s, %s, %s offen" % (vB, vA, X, sD), tag="xo")
I("s_lshl_b32 %s, s2, 12" % sC); I("s_add_u32 %s, %s, 0x%x" % (sC, sC, WS_H3))
def ld_h3(tag):
    for u in range(4):
        I("buffer_load_dwordx4 %s, %s, %s, %s offen offset:%d sc1" % (V(H + 4*u, 4), vL16, WS, sC, 1024*u), tag=tag)
gather("h3", ld_h3, check64([H, H + 4, H + 8, H + 12]))
for u in range(4):
    for p in range(2):
        I("v_lshlrev_b32 %s, 16, %s" % (V(Z + 4*u + 2*p), V(H + 4*u + 2 + p)))
        I("v_and_b32 %s, 0xffff0000, %s" % (V(Z + 4*u + 2*p + 1), V(H + 4*u + 2 + p)))
for r in range(4):
    I("v_add_f32 %s, %s, %s" % (V(Z + r), V(Z + r), V(Z + 4 + r)))
    I("v_add_f32 %s, %s, %s" % (V(Z + 8 + r), V(Z + 8 + r), V(Z + 12 + r)))
for r in range(4): I("v_add_f32 %s, %s, %s" % (V(Z + r), V(Z + r), V(Z + 8 + r)))
I("v_lshlrev_b32 %s, 16, %s" % (vB, vB))
I("v_permlane16_swap_b32 %s, %s" % (V(Z), V(Z + 1)))
I("v_permlane16_swap_b32 %s, %s" % (V(Z + 2), V(Z + 3)))
I("v_add_f32 %s, %s, %s" % (V(Z), V(Z), V(Z + 1)))
I("v_add_f32 %s, %s, %s" % (V(Z + 2), V(Z + 2), V(Z + 3)))
I("v_permlane32_swap_b32 %s, %s" % (V(Z), V(Z + 2)))
I("v_add_f32 %s, %s, %s" % (V(Z), V(Z), V(Z + 2)))
I("v_add_f32_dpp %s, %s, %s row_ror:8%s" % (V(Z), V(Z), V(Z), DPP))
I("v_add_f32 %s, %s, %s" % (V(Z), V(Z), vB))
I("v_cvt_pk_bf16_f32 %s, %s, %s" % (V(Z), V(Z), V(Z)))
set_exec(0x00ff00ff00ff00ff)
I("buffer_store_short %s, %s, %s, %s offen" % (V(Z), vA, OUT, sD), tag="st")
I("s_cmp_lg_u32 s2, 0")
I("s_cbranch_scc1 L_OUT")
set_exec(1)
I("v_mov_b32 %s, 0" % vA)
I("buffer_store_dword %s, %s, %s, 0 offen sc1" % (V(GR), vA, WS), tag="st")
DBL = os.environ.get("DBL")
if DBL:
    kk, na, nb = DBL.split(",")
    stamp("end")
    k.lgkm(0)
    ia, ib = names.index(na), names.index(nb)
    I("s_sub_u32 %s, s%d, s%d" % (sA, STAMP0 + 2*ib, STAMP0 + 2*ia))
    I("s_min_u32 %s, %s, 10000" % (sA, sA))
    I("s_mul_i32 %s, %s, %s" % (sA, sA, kk))
    k.label("L_dbl")
    I("s_memrealtime s[66:67]")
    k.lgkm(0)
    I("s_sub_u32 %s, s66, s%d" % (sB, STAMP0 + 2*names.index("end")))
    I("s_cmp_lt_u32 %s, %s" % (sB, sA))
    I("s_cbranch_scc1 L_dbl")
k.label("L_OUT")
if STAMP and not DBL:
    set_exec(-1)
    stamp("end")
    k.lgkm(0)
    I("s_lshl_b32 %s, s2, 10" % sA); I("s_lshl_b32 %s, %s, 7" % (sB, sW)); I("s_add_u32 %s, %s, %s" % (sA, sA, sB)); I("s_add_u32 %s, %s, 0x%x" % (sA, sA, WS_STAMP))
    I("v_mov_b32 %s, 0" % vA)
    set_exec(1)
    for n in range(nstamp[0]):
        I("v_mov_b32 %s, s%d" % (vB, STAMP0 + 2*n))
        I("buffer_store_dword %s, %s, %s, %s offen offset:%d" % (vB, vA, WS, sA, 4*n))
k.label("L_END")
I("s_endpgm")
k.raw('''.section .rodata,"a"
.p2align 6
.amdhsa_kernel %s
  .amdhsa_next_free_vgpr 256
  .amdhsa_next_free_sgpr 102
  .amdhsa_accum_offset 256
  .amdhsa_group_segment_fixed_size 0
  .amdhsa_kernarg_size 104
  .amdhsa_user_sgpr_count 2
  .amdhsa_user_sgpr_kernarg_segment_ptr 1
  .amdhsa_system_sgpr_workgroup_id_x 1
  .amdhsa_float_denorm_mode_32 3
.end_amdhsa_kernel''' % KN)
open(sys.argv[1], "w").write(k.text() + ("; STAMPS " + ",".join(names) + "\n" if STAMP else ""))
print("instructions:", k.count, "stamps:", nstamp[0], "lds:", LDS_SIZE, file=sys.stderr)
```

```python
import sys, os, math, struct
from asmlib import Asm
KN = "parallel_sum__compressed_kv_cla__glu_gated_glu__decode_kernel"
def knob(name, d): return int(os.environ.get(name, d))
STAMP = knob("STAMP", 0)
SPIN_MAX = 20000
R0 = knob("R0", 2)
GO = knob("GO", 1)
TLB = 0
LOCAL = knob("LOCAL", 1)
NL = knob("NL", 6)
K_FLY = knob("K_FLY", 40)
K_FLYB = knob("K_FLYB", 40)
L1_AT = knob("L1_AT", 0)
L2_AT = knob("L2_AT", 0)
PF = knob("PF", 1)
PT3 = knob("PT3", 1)

WS_H0 = 0x10000; WS_H1 = 0x50000; WS_H25 = 0x70000; WS_HF = 0xb0000; WS_H3 = 0xf0000; WS_H0L = 0x110000; WS_H2 = 0x200000
WS_STAMP = 0x800000; WS_SIZE = 0x10000000
WUKI = 0
Q_ = 0; P_ = 8704; MX = 11008; OW = 11520; HB = 12864; CP = 0
QP = 16896; XI = QP; CNT = QP + 4608; LOC = CNT + 4
CKV = QP + 4608 + 128
WQI = CKV + 112*1056
WUVI = CKV; WOI = CKV + 16896; GI = CKV + 33792; UI = CKV + 42240; WDI = CKV + 50688
LDS_SIZE = CKV + 128*1056
X, CK, WQ, WUK, WUV, WO, GA, UP, DN, OUT, WS = ["s[%d:%d]" % (4 + 4*k, 7 + 4*k) for k in range(11)]
_s = [48]
def S(n=1):
    if n == 2 and _s[0] & 1: _s[0] += 1
    r = _s[0]; _s[0] += n
    assert _s[0] <= 102
    return "s%d" % r if n == 1 else "s[%d:%d]" % (r, r + 1)
sW = "s3"
sTT = S(2); sT = "s48"; sT2 = "s49"
sM = S(2); sHi = S(2); mk2 = S(2); mk8 = S(2); mkJ = S(2); sPC = S(2); sTX = S(2)
sX8, sI, sJ, sH, sG, sHG, sTile, sFS, sGrp, sW4 = [S() for _ in range(10)]
sA, sB, sC, sD, sSpin, sOnes = [S() for _ in range(6)]
sCKo = S(); sCKm = S()
sHFp, sH25p, sH25g, sH3p, sUV, sWD, sW2112 = [S() for _ in range(7)]
sL1a, sL1m = S(), S()
sLoc, sRS = S(), S()
sTXa, sT2x = ['s' + x for x in sTX[2:-1].split(':')]
STP = [S(2) for _ in range(3)]
_v = [1]
def Vn():
    r = _v[0]; _v[0] += 1
    return "v%d" % r
def V(a, n=1): return "v%d" % a if n == 1 else "v[%d:%d]" % (a, a + n - 1)
vL, vN, vS, vL16, vS16, vL7, vTr, vF16 = [Vn() for _ in range(8)]
vA, vB, vC = Vn(), Vn(), Vn()
aTrA, oPub, oH1, aQw, oH2, aOWw, aOWr, aST2r, oWO, oWD = [Vn() for _ in range(10)]
r0, r1, r2, r3, r4, r5, r6, r7, r8, r9, r10 = [Vn() for _ in range(11)]
vST = Vn()
vSC, vX = Vn(), Vn()
assert _v[0] <= 36, _v[0]
NM = 36
vNM, vRS = V(36), V(37)
XF = 40; GR = 48; ACC = 52; QB = 80; FR = 128
aQKa, aQKb, aQr, aMXw, aMXr, aPw, aTrWD, aHBr, aTrF, aCPw, aCPr = r0, r1, r2, r3, r4, r5, r6, r7, r8, r9, r10
oGU = V(QB + 40)
aPVa, aPVb, aPr, oH2p, aMXr_h, oHF, aHBw, oOut, oH3 = r0, r1, r2, r3, r4, r5, r6, r7, r8

k = Asm()
I = k.I
names = []; pend = []
ONLY = [x for x in os.environ.get("ONLY", "").split(",") if x]
def flush(force=False):
    if not pend: return
    if force: I("s_waitcnt lgkmcnt(0)")
    for (n, p) in pend: I("v_writelane_b32 %s, s%s, %d" % (vST, p[2:].split(":")[0], n))
    pend.clear()
def stamp(name):
    if not STAMP or (ONLY and name not in ONLY): return
    if name not in names: names.append(name)
    if len(pend) == 3: flush(True)
    used = [p for _, p in pend]
    p = [x for x in STP if x not in used][0]
    I("s_memrealtime %s" % p)
    pend.append((names.index(name), p))
def lgkm(n=0):
    k.lgkm(n)
    if n == 0: flush()
def br(text):
    flush(True); I(text)
def label(L):
    flush(True) if not k.dead else pend.clear()
    k.label(L)
def ex(m): I("s_mov_b64 exec, %s" % m)
def ex32(val): I("s_mov_b32 exec_lo, 0x%08x" % val); I("s_mov_b32 exec_hi, 0x%08x" % val)
def mfma(d, a, b, c):
    I("v_mfma_f32_16x16x32_bf16 %s, %s, %s, %s" % (V(d, 4), V(a, 4), V(b, 4), V(c, 4) if isinstance(c, int) else c))
DPP = " row_mask:0xf bank_mask:0xf"
def setmask(mk, val):
    a_, b_ = mk[2:-1].split(":")
    I("s_mov_b32 s%s, 0x%08x" % (a_, val)); I("s_mov_b32 s%s, 0x%08x" % (b_, val))
def code_prefetch():
    if not PF: return
    lo_, hi_ = sPC[2:-1].split(":")
    L = k.newlabel("L_pc")
    I("s_getpc_b64 %s" % sPC)
    k.raw(L + ":")
    I("s_sub_u32 s%s, s%s, %s - %s" % (lo_, lo_, L, KN))
    I("s_subb_u32 s%s, s%s, 0" % (hi_, hi_))
    I("s_lshl2_add_u32 %s, %s, %s" % (sL1a, sI, sW))
    I("s_add_u32 %s, %s, 16" % (sL1a, sL1a))
    I("s_min_u32 %s, %s, (L_CODE_END - %s - 4) / 128" % (sL1a, sL1a, KN))
    I("s_lshl_b32 %s, %s, 7" % (sL1a, sL1a))
    I("s_load_dword %s, %s, %s" % (sL1m, sPC, sL1a))
def ckv_rows(z0, z1, throttle=True):
    for z in range(z0, z1):
        fly = K_FLY if z < 16 else K_FLYB
        if throttle and max(len(l) for l in k.vms) >= fly:
            I("s_waitcnt vmcnt(%d)" % (fly - 1))
            for l in k.vms:
                if len(l) > fly - 1: del l[:len(l) - (fly - 1)]
        if z == 16:
            I("s_sub_u32 %s, %s, 0x3000" % (sCKo, sCKo)); I("s_xor_b32 %s, %s, 0x10000" % (sCKo, sCKo))
        elif z and (z & 3) == 0:
            I("s_add_u32 %s, %s, 4096" % (sCKo, sCKo))
        zz = z & 15
        I("s_add_u32 m0, %s, %d" % (sCKm, (z >> 4) * 64 * 1056 + (zz >> 2) * 4 * 1056 + 32 * (zz & 3)))
        I("buffer_load_dwordx4 %s, %s, %s offen offset:%d nt lds" % (vL16, CK, sCKo, 1024 * (z & 3)), tag="ckA" if z < 16 else "ckB")
def gather(name, loads, check, after_first=None, issued=False):
    Lr = k.newlabel("L_retry_" + name); Ld = k.newlabel("L_done_" + name)
    if not issued: loads(name)
    if after_first: after_first()
    k.wait_vm(name)
    stamp(name + "_1st")
    flush(True)
    check()
    I("s_cbranch_scc0 %s" % Ld)
    I("s_mov_b32 %s, 0" % sSpin)
    k.label(Lr)
    I("s_add_u32 %s, %s, 1" % (sSpin, sSpin))
    I("s_cmp_gt_u32 %s, %d" % (sSpin, SPIN_MAX))
    I("s_cbranch_scc1 L_END")
    loads(name)
    k.wait_vm0()
    check()
    I("s_cbranch_scc1 %s" % Lr)
    k.label(Ld)
    stamp(name + "_ok")
def check64(regs):
    def f():
        for n, r in enumerate(regs):
            I("v_cmp_ne_u64 %s, %s, %s" % ("vcc" if n == 0 else sM, sTT, V(r, 2)))
            if n > 0: I("s_or_b64 vcc, vcc, %s" % sM)
        if len(regs) == 1: I("s_cmp_lg_u64 vcc, 0")
    return f
def check_frags(base, n, sT2=sT2):
    def f():
        acc = ACC + 24
        I("v_xor_b32 %s, %s, %s" % (V(acc), sT, V(base)))
        I("v_xor_b32 %s, %s, %s" % (V(acc + 1), sT2, V(base + 1)))
        for i in range(n):
            for (o, t, a) in ((0, sT, acc), (1, sT2, acc + 1), (6, sT, acc), (7, sT2, acc + 1)):
                if i == 0 and o < 2: continue
                I("v_bitop3_b32 %s, %s, %s, %s bitop3:0xf6" % (V(a), V(a), V(base + 8*i + o), t))
        I("v_cmp_ne_u64 vcc, 0, %s" % V(acc, 2))
        I("s_cmp_lg_u64 vcc, 0")
    return f
def publish(soff, tag="st"):
    I("v_cvt_pk_bf16_f32 %s, %s, %s" % (V(GR + 2), V(ACC), V(ACC + 1)))
    I("v_cvt_pk_bf16_f32 %s, %s, %s" % (V(GR + 3), V(ACC + 2), V(ACC + 3)))
    ex(mk2)
    I("buffer_store_dwordx4 %s, %s, %s, %s offen sc1" % (V(GR, 4), oPub, WS, soff), tag=tag)
    ex(-1)
def lstore(text, tag="st"):
    if not LOCAL:
        for t in text: I(t + " sc1", tag=tag)
        return
    La, Lb = k.newlabel("L_ls"), k.newlabel("L_ls")
    I("s_cmp_eq_u32 %s, 0" % sLoc)
    I("s_cbranch_scc1 %s" % La)
    for t in text: I(t, tag=tag)
    I("s_branch %s" % Lb)
    k.label(La)
    for t in text: I(t + " sc1", tag=tag)
    k.label(Lb)
def red4(D, out):
    t1 = ACC + 16
    for p in range(2):
        for r in range(4):
            I("v_add_f32_dpp %s, %s, %s row_ror:8 row_mask:0xf bank_mask:0x3" % (V(t1 + 4*p + r), V(D + 4*p + r), V(D + 4*p + r)))
        for r in range(4):
            I("v_add_f32_dpp %s, %s, %s row_ror:8 row_mask:0xf bank_mask:0xc" % (V(t1 + 4*p + r), V(D + 8 + 4*p + r), V(D + 8 + 4*p + r)))
    for r in range(4):
        I("v_add_f32_dpp %s, %s, %s row_shl:4 row_mask:0xf bank_mask:0x5" % (V(out + r), V(t1 + r), V(t1 + r)))
    for r in range(4):
        I("v_add_f32_dpp %s, %s, %s row_shr:4 row_mask:0xf bank_mask:0xa" % (V(out + r), V(t1 + 4 + r), V(t1 + 4 + r)))
    for r in range(4):
        I("v_add_f32_dpp %s, %s, %s quad_perm:[2,3,0,1]%s" % (V(out + r), V(out + r), V(out + r), DPP))
def red_j(shs):
    for sh in shs:
        for r in range(4):
            I("v_add_f32_dpp %s, %s, %s row_ror:%d%s" % (V(ACC + r), V(ACC + r), V(ACC + r), sh, DPP))
def role(lo, hi, name):
    I("s_cmp_ge_u32 %s, 4" % sW)
    br("s_cbranch_scc1 L_%s_hi" % name)
    lo()
    br("s_branch L_%s_end" % name)
    label("L_%s_hi" % name)
    hi()
    label("L_%s_end" % name)

hdr = open("cdna_kernels/%s.s.ref" % KN[:-7]).read().split("\n")
for ln in hdr:
    if ln.startswith("; @launch"): break
    k.raw(ln)
k.raw("; @launch grid=(256,1,1) block=(512,1,1) lds=%d" % LDS_SIZE)
k.raw('.amdgcn_target "amdgcn-amd-amdhsa--gfx950"\n.text\n.globl %s\n.p2align 12\n.p2align 8\n.type %s,@function\n%s:' % (KN, KN, KN))
sizes = {4: 2048, 8: 8 << 20, 12: 4 << 20, 16: 4 << 20, 20: 4 << 20, 24: 4 << 20, 28: 512*1376*2, 32: 512*1376*2, 36: 512*1376*2, 40: 2048, 44: WS_SIZE}
for srd, off in ((12, 16), (4, 0), (16, 24), (8, 8), (44, 96)):
    I("s_load_dwordx2 s[%d:%d], s[0:1], %d" % (srd, srd + 1, off))
stamp("entry")
if STAMP: I("v_mov_b32 %s, 0" % vST)
I("s_cmp_ge_u32 s2, 256")
I("s_cbranch_scc1 L_END")
I("v_lshrrev_b32 %s, 6, v0" % vA)
I("v_and_b32 %s, 63, v0" % vL)
I("v_readfirstlane_b32 %s, %s" % (sW, vA))
I("v_and_b32 %s, 15, v0" % vN)
I("v_bfe_u32 %s, v0, 4, 2" % vS)
I("s_and_b32 %s, s2, 7" % sX8)
I("s_bfe_u32 %s, s2, 0x30003" % sJ)
I("s_lshr_b32 %s, s2, 6" % sG)
I("s_lshl2_add_u32 %s, %s, %s" % (sH, sX8, sG))
for srd in (12, 4, 16, 44):
    I("s_mov_b32 s%d, 0x%x" % (srd + 2, sizes[srd])); I("s_mov_b32 s%d, 0x20000" % (srd + 3))
I("v_and_b32 %s, 1, %s" % (vA, vS))
I("v_lshlrev_b32 %s, 15, %s" % (vF16, vA))
I("v_lshrrev_b32 %s, 1, %s" % (vB, vS))
I("v_lshl_add_u32 %s, %s, 18, %s" % (vF16, vB, vF16))
I("v_lshl_add_u32 %s, %s, 4, %s" % (vF16, vN, vF16))
I("s_lshl_b32 %s, %s, 19" % (sD, sJ)); I("s_lshl_b32 %s, %s, 8" % (sC, sH)); I("s_add_u32 %s, %s, %s" % (sD, sD, sC))
I("s_lshr_b32 %s, %s, 1" % (sA, sW)); I("s_and_b32 %s, %s, 1" % (sB, sW))
I("s_lshl2_add_u32 %s, %s, %s" % (sWD, sA, sB))
I("s_lshl_b32 %s, %s, 14" % (sA, sWD)); I("s_add_u32 %s, %s, %s" % (sUV, sD, sA)); I("s_add_u32 %s, %s, 8192" % (sC, sUV))
I("s_mul_i32 %s, %s, 2112" % (sW2112, sW))
I("s_add_u32 m0, %s, %d" % (sW2112, WQI))
I("v_lshlrev_b32 %s, 4, %s" % (vL16, vL))
I("v_lshlrev_b32 %s, 4, %s" % (vS16, vS))
I("v_and_b32 %s, 1, %s" % (r1, vN))
I("v_lshl_add_u32 %s, %s, 10, %s" % (vC, r1, vS16))
I("v_lshrrev_b32 %s, 1, %s" % (vB, vN))
I("v_lshl_add_u32 %s, %s, 7, %s" % (vC, vB, vC))
I("s_lshl3_add_u32 %s, %s, %s" % (sGrp, sH, sJ))
I("s_lshl3_add_u32 %s, %s, %s" % (sA, sGrp, sW)); I("s_lshl_b32 %s, %s, 7" % (sA, sA))
I("s_add_u32 %s, %s, 0x%x" % (sHFp, sA, WS_H0L))
I("s_lshl_b32 %s, %s, 10" % (sSpin, sB)); I("s_add_u32 %s, %s, %d" % (sSpin, sSpin, XI)); I("s_lshl_b32 %s, %s, 6" % (sB, sB))
lgkm(0)
stamp("karg")
I("s_load_dword %s, s[44:45], 0" % sT)
I("buffer_load_dwordx4 %s, %s, %s offen nt lds" % (vF16, WQ, sUV), tag="wq")
I("s_add_u32 m0, m0, 1056")
I("s_cmp_lt_u32 %s, 2" % sW)
I("buffer_load_dwordx4 %s, %s, %s offen nt lds" % (vF16, WQ, sC), tag="wq")
I("s_cbranch_scc0 L_nox")
I("s_mov_b32 m0, %s" % sSpin)
I("buffer_load_dwordx4 %s, %s, %s offen lds" % (vC, X, sB), tag="wq")
k.label("L_nox")
I("s_mov_b32 m0, %s" % sW2112)
I("s_barrier")
stamp("O1")
if LOCAL:
    ex(1)
    I("buffer_load_dword %s, %s, %s, %s offen sc1" % (vX, vL16, WS, sHFp), tag="pt")
    ex(-1)
I("buffer_load_dwordx4 %s, %s, %s offen nt lds" % (vF16, WUK, sUV), tag="wuk")
I("s_add_u32 m0, m0, 1056")
I("s_add_u32 %s, %s, 0x%x" % (sH25p, sA, WS_H25))
I("buffer_load_dwordx4 %s, %s, %s offen nt lds" % (vF16, WUK, sC), tag="wuk")
I("s_add_u32 %s, %s, 0x%x" % (sC, sA, WS_H0))
I("s_mov_b32 s10, 0x%x" % sizes[8]); I("s_mov_b32 s11, 0x20000")
I("s_lshr_b32 %s, s2, 3" % sI)
I("s_lshr_b32 %s, %s, 2" % (sA, sI)); I("s_lshl3_add_u32 %s, %s, %s" % (sTile, sX8, sA))
I("s_and_b32 %s, %s, 3" % (sW4, sW))
I("s_mul_i32 %s, %s, %d" % (sCKm, sW4, 16*1056)); I("s_add_u32 %s, %s, %d" % (sCKm, sCKm, CKV))
I("s_and_b32 %s, %s, 2" % (sA, sI)); I("s_lshl1_add_u32 %s, %s, %s" % (sA, sA, sW4))
I("s_lshl_b32 %s, %s, 14" % (sA, sA)); I("s_lshl_b32 %s, %s, 17" % (sCKo, sTile)); I("s_add_u32 %s, %s, %s" % (sCKo, sCKo, sA))
if R0:
    I("s_cmp_lt_u32 %s, 4" % sW)
    br("s_cbranch_scc1 L_r0")
    ckv_rows(0, R0, throttle=False)
    label("L_r0")
for srd, off in ((20, 32), (24, 40), (28, 56), (32, 64), (36, 72), (40, 80)):
    I("s_load_dwordx2 s[%d:%d], s[0:1], %d" % (srd, srd + 1, off))
for srd in (20, 24, 28, 32, 36, 40):
    I("s_mov_b32 s%d, 0x%x" % (srd + 2, sizes[srd])); I("s_mov_b32 s%d, 0x20000" % (srd + 3))
I("s_and_b32 %s, %s, 3" % (sHG, sI))
I("s_lshl3_add_u32 %s, %s, %s" % (sFS, sG, sX8))
setmask(mk8, 0x00ff00ff); setmask(mk2, 0x00030003)
I("s_lshl_b32 %s, %s, 1" % (sA, sJ)); I("s_lshl_b64 %s, %s, %s" % (mkJ, mk2, sA))
I("s_getreg_b32 %s, hwreg(HW_REG_XCC_ID)" % sT2x)
I("s_mov_b32 %s, 0x3f803f80" % sOnes)
ONE = QB + 44
for r in range(4): I("v_mov_b32 %s, %s" % (V(ONE + r), sOnes))
I("v_cmp_lt_u32 %s, 7, %s" % (sHi, vN))
t8, t9, t10, t11, t12, t13, t14 = [V(QB + 32 + i) for i in range(7)]
I("v_lshrrev_b32 %s, 2, %s" % (vA, vL)); I("v_and_b32 %s, 3, %s" % (vB, vL)); I("v_and_b32 %s, 1, %s" % (vC, vA))
I("v_mul_u32_u24 %s, 1056, %s" % (vTr, vA)); I("v_lshl_add_u32 %s, %s, 3, %s" % (vTr, vB, vTr))
I("s_lshl_b32 %s, %s, 5" % (sA, sW)); I("v_add_u32 %s, %s, %s" % (aTrA, sA, vTr))
I("v_add_u32 %s, %d, %s" % (r0, WQI, aTrA))
I("v_lshl_add_u32 %s, %s, 6, %s" % (oPub, r1, vS16))
I("v_lshrrev_b32 %s, 3, %s" % (t8, vL)); I("v_bfe_u32 %s, %s, 3, 1" % (t9, vL)); I("v_lshrrev_b32 %s, 5, %s" % (t11, vL))
I("v_and_b32 %s, 7, %s" % (vL7, vL)); I("v_lshlrev_b32 %s, 4, %s" % (t13, vL7))
I("v_mul_u32_u24 %s, 1056, %s" % (t10, vN)); I("v_add_u32 %s, %s, %s" % (t10, t10, vS16))
I("v_and_b32 %s, 1, %s" % (t12, vS))
I("v_mul_u32_u24 %s, 288, %s" % (aCPw, vC)); I("v_lshl_add_u32 %s, %s, 3, %s" % (aCPw, vB, aCPw)); I("v_lshl_add_u32 %s, %s, 5, %s" % (aCPw, t8, aCPw))
I("s_mul_i32 %s, %s, 576" % (sA, sW)); I("v_add_u32 %s, %s, %s" % (aCPw, sA, aCPw))
I("v_mul_u32_u24 %s, 288, %s" % (aCPr, vN)); I("v_add_u32 %s, %s, %s" % (aCPr, aCPr, vS16))
I("s_lshl_b32 %s, %s, 8" % (sA, sW4)); I("v_add_u32 %s, %s, %s" % (r2, sA, t10))
I("s_lshl3_add_u32 %s, %s, %s" % (sA, sH, sW)); I("s_lshl_b32 %s, %s, 10" % (sH25g, sA))
I("v_mov_b32 %s, 0" % V(ACC + 8)); I("v_mov_b32 %s, 0" % V(ACC + 10)); I("v_mov_b32 %s, %d" % (V(ACC + 11), 1 if LOCAL else 0))
ex(1)
I("ds_write_b64 %s, %s offset:%d" % (V(ACC + 8), V(ACC + 10, 2), CNT))
ex(-1)
PT = 1 if LOCAL else 0
def wait_role(n_after):
    I("s_waitcnt vmcnt(%d)" % (n_after + R0))
    if R0:
        La = k.newlabel("L_wr")
        I("s_cmp_ge_u32 %s, 4" % sW)
        I("s_cbranch_scc1 %s" % La)
        I("s_waitcnt vmcnt(%d)" % n_after)
        k.label(La)
stamp("preE")
lgkm(0)
stamp("E")
I("s_add_u32 %s, %s, 1" % (sT, sT)); I("s_not_b32 %s, %s" % (sT2, sT))
I("v_mov_b32 %s, %s" % (V(GR), sT)); I("v_mov_b32 %s, %s" % (V(GR + 1), sT2))
I("s_and_b32 %s, %s, 15" % (sT2x, sT2x)); I("s_add_u32 %s, %s, 1" % (sT2x, sT2x)); I("s_xor_b32 %s, %s, %s" % (sT2x, sT2x, sT2)); I("s_mov_b32 %s, %s" % (sTXa, sT))
I("v_mov_b32 %s, %s" % (V(ACC + 12), sT)); I("v_mov_b32 %s, %s" % (V(ACC + 13), sT2x))
wait_role(2 + PT)
stamp("wq")
I("s_barrier")
stamp("B1")
WQF = QB
I("ds_read_b128 %s, %s offset:%d" % (V(XF, 4), vL16, XI))
I("ds_read_b128 %s, %s offset:%d" % (V(XF + 4, 4), vL16, XI + 1024))
for z in range(4):
    I("ds_read_b64_tr_b16 %s, %s offset:%d" % (V(WQF + 2*z, 2), r0, 256*z))
k.lgkm(4)
mfma(ACC + 8, ONE, XF, "0")
mfma(ACC + 8, ONE, XF + 4, ACC + 8)
k.lgkm(2)
mfma(ACC, WQF, XF, "0")
mfma(ACC + 4, WQF, ONE, "0")
lgkm(0)
mfma(ACC, WQF + 4, XF + 4, ACC)
mfma(ACC + 4, WQF + 4, ONE, ACC + 4)
for sh in (8, 4, 2):
    I("v_add_f32_dpp %s, %s, %s row_ror:%d%s" % (V(ACC + 8), V(ACC + 8), V(ACC + 8), sh, DPP))
I("v_mul_f32 %s, 0xbb000000, %s" % (vNM, V(ACC + 8)))
for r in range(4): I("v_fmac_f32 %s, %s, %s" % (V(ACC + r), V(ACC + 4 + r), vNM))
ex(mkJ)
if LOCAL:
    I("v_cvt_pk_bf16_f32 %s, %s, %s" % (V(ACC + 14), V(ACC), V(ACC + 1)))
    I("v_cvt_pk_bf16_f32 %s, %s, %s" % (V(ACC + 15), V(ACC + 2), V(ACC + 3)))
    I("buffer_store_dwordx4 %s, %s, %s, %s offen" % (V(ACC + 12, 4), oPub, WS, sHFp), tag="st")
I("v_cvt_pk_bf16_f32 %s, %s, %s" % (V(GR + 2), V(ACC), V(ACC + 1)))
I("v_cvt_pk_bf16_f32 %s, %s, %s" % (V(GR + 3), V(ACC + 2), V(ACC + 3)))
I("buffer_store_dwordx4 %s, %s, %s, %s offen sc1" % (V(GR, 4), oPub, WS, sC), tag="st")
ex(-1)
stamp("A0pub")
a = ACC + 16; b = ACC + 17
I("v_dot2_f32_bf16 %s, %s, %s, 0" % (V(a), V(XF), V(XF)))
for r in range(1, 8): I("v_dot2_f32_bf16 %s, %s, %s, %s" % (V(a), V(XF + r), V(XF + r), V(a)))
I("s_add_u32 %s, %s, 0x%x" % (sB, sH25g, WS_H0L)); I("s_add_u32 %s, %s, 0x%x" % (sC, sH25g, WS_H0)); I("s_add_u32 %s, %s, 0x%x" % (sH25g, sH25g, WS_H25))
for sh in (8, 4, 2):
    I("v_add_f32_dpp %s, %s, %s row_ror:%d%s" % (V(a), V(a), V(a), sh, DPP))
for sw in ("16", "32"):
    I("v_mov_b32 %s, %s" % (V(b), V(a)))
    I("v_permlane%s_swap_b32 %s, %s" % (sw, V(a), V(b)))
    I("v_add_f32 %s, %s, %s" % (V(a), V(a), V(b)))
I("v_mul_f32 %s, 0x3b000000, %s" % (V(a), V(a)))
I("v_fma_f32 %s, -%s, %s, %s" % (V(a), vNM, vNM, V(a)))
I("v_max_f32 %s, 0, %s" % (V(a), V(a)))
I("v_add_f32 %s, 0x3727c5ac, %s" % (V(a), V(a)))
I("v_rsq_f32 %s, %s" % (vRS, V(a)))
WUF = FR
def ld_h0(soff): I("buffer_load_dwordx4 %s, %s, %s, %s offen sc1" % (V(ACC + 4, 4), vL16, WS, soff), tag="h0")
def chk(tt):
    I("v_cmp_ne_u64 vcc, %s, %s" % (tt, V(ACC + 4, 2)))
    I("s_cmp_lg_u64 vcc, 0")
if LOCAL: I("s_waitcnt vmcnt(%d)" % knob("LWN", 2))
else: I("s_waitcnt vmcnt(0)")
stamp("W")
ld_h0(sB if LOCAL else sC)
I("s_waitcnt vmcnt(3)")
I("s_barrier")
for ks in range(4):
    I("ds_read_b128 %s, %s offset:%d" % (V(WUF + 4*ks, 4), r2, WUKI + 64*ks))
SCALE = struct.unpack("<I", struct.pack("<f", math.log2(math.e) / math.sqrt(128.0)))[0]
I("v_mul_f32 %s, 0x%08x, %s" % (vSC, SCALE, vRS))
I("s_lshr_b32 %s, %s, 1" % (sA, sW4))
I("v_readlane_b32 %s, %s, %s" % (sRS, vRS, sA))
k.wait_vm0()
stamp("h0_1st"); flush(True)
chk(sTX if LOCAL else sTT)
I("s_cbranch_scc0 L_h0_done")
I("s_mov_b32 %s, 0" % sSpin)
k.label("L_h0_retry")
I("s_add_u32 %s, %s, 1" % (sSpin, sSpin))
I("s_cmp_gt_u32 %s, %d" % (sSpin, SPIN_MAX))
I("s_cbranch_scc1 L_END")
if LOCAL:
    ld_h0(sB)
    k.wait_vm0()
    chk(sTX)
    I("s_cbranch_scc0 L_h0_done")
    I("s_cmp_lt_u32 %s, %d" % (sSpin, NL))
    I("s_cbranch_scc1 L_h0_retry")
ld_h0(sC)
k.wait_vm0()
chk(sTT)
I("s_cbranch_scc1 L_h0_retry")
I("v_mov_b32 %s, 0" % V(ACC + 8))
I("ds_write_b32 %s, %s offset:%d" % (V(ACC + 8), V(ACC + 8), LOC))
k.label("L_h0_done")
stamp("h0_ok")
I("ds_write_b64 %s, %s offset:%d" % (aCPw, V(ACC + 6, 2), QP))
lgkm(0)
I("s_barrier")
stamp("B2")
I("s_cmp_ge_u32 %s, 4" % sW)
br("s_cbranch_scc1 L_a1_hi")
QPF = FR + 16
for ks in range(4):
    I("ds_read_b128 %s, %s offset:%d" % (V(QPF + 4*ks, 4), aCPr, QP + 64*ks))
I("s_lshl2_add_u32 %s, %s, %s" % (sA, sGrp, sW)); I("s_lshl_b32 %s, %s, 7" % (sA, sA)); I("s_add_u32 %s, %s, 0x%x" % (sA, sA, WS_H1))
for ks in range(4):
    k.lgkm(3 - ks)
    mfma(ACC, WUF + 4*ks, QPF + 4*ks, "0" if ks == 0 else ACC)
red_j((8, 4, 2))
for r in range(4): I("v_mul_f32 %s, %s, %s" % (V(ACC + r), vSC, V(ACC + r)))
publish(sA)
stamp("A1pub")
br("s_branch L_pc2")
label("L_a1_hi")
R1 = R0 + knob("R1X", 10)
ckv_rows(R0, R1, throttle=False)
hi_vms = [list(l) for l in k.vms]
label("L_pc2")
def common_pc():
    I("v_lshlrev_b32 %s, 5, %s" % (oWO, vS)); I("v_lshl_add_u32 %s, %s, 2, %s" % (oWO, t9, oWO)); I("v_lshl_add_u32 %s, %s, 10, %s" % (oWO, oWO, t13))
    I("s_lshl_b32 %s, %s, 11" % (sC, sWD)); I("s_lshl_b32 %s, %s, 7" % (sB, sJ)); I("s_add_u32 %s, %s, %s" % (sC, sC, sB))
    I("s_lshl_b32 %s, %s, 17" % (sA, sH)); I("s_add_u32 %s, %s, %s" % (sA, sA, sC)); I("v_add_u32 %s, %s, %s" % (oWO, sA, oWO))
    I("v_lshlrev_b32 %s, 5, %s" % (t14, t12)); I("v_lshl_add_u32 %s, %s, 2, %s" % (t14, t9, t14)); I("v_add_u32 %s, %s, %s" % (t14, t14, t11))
    I("v_lshl_add_u32 %s, %s, 10, %s" % (oWD, t14, t13))
    I("s_lshl_b32 %s, %s, 16" % (sA, sFS)); I("s_add_u32 %s, %s, %s" % (sA, sA, sC)); I("v_add_u32 %s, %s, %s" % (oWD, sA, oWD))
    I("v_lshlrev_b32 %s, 4, %s" % (oH1, vB)); I("v_lshl_add_u32 %s, %s, 7, %s" % (oH1, vA, oH1))
    I("s_lshl3_add_u32 %s, %s, %s" % (sA, sHG, sW)); I("s_lshl_b32 %s, %s, 12" % (sA, sA))
    I("s_lshr_b32 %s, %s, 5" % (sB, sTile)); I("s_lshl_b32 %s, %s, 6" % (sB, sB)); I("s_add_u32 %s, %s, %s" % (sA, sA, sB)); I("s_add_u32 %s, %s, 0x%x" % (sA, sA, WS_H1))
    I("v_add_u32 %s, %s, %s" % (oH1, sA, oH1))
    I("v_lshlrev_b32 %s, 7, %s" % (aQw, vS)); I("v_lshl_add_u32 %s, %s, 4, %s" % (aQw, vB, aQw)); I("v_lshl_add_u32 %s, %s, 3, %s" % (aQw, vC, aQw))
    I("v_lshl_add_u32 %s, %s, 6, %s" % (aQw, t9, aQw))
    I("s_mul_i32 %s, %s, 544" % (sA, sW)); I("v_add_u32 %s, %s, %s" % (aQw, sA, aQw))
    I("v_lshl_add_u32 %s, %s, 8, %s" % (oH2, t8, t13))
    I("s_lshl3_add_u32 %s, %s, %s" % (sA, sGrp, sW)); I("s_lshl_b32 %s, %s, 11" % (sA, sA)); I("s_add_u32 %s, %s, 0x%x" % (sA, sA, WS_H2))
    I("v_add_u32 %s, %s, %s" % (oH2, sA, oH2))
    I("v_lshlrev_b32 %s, 6, %s" % (aOWw, t12)); I("v_lshl_add_u32 %s, %s, 3, %s" % (aOWw, vL7, aOWw)); I("v_lshl_add_u32 %s, %s, 2, %s" % (aOWw, t11, aOWw))
    I("s_lshr_b32 %s, %s, 2" % (sA, sW)); I("s_lshl1_add_u32 %s, %s, %s" % (sA, sW4, sA)); I("s_mul_i32 %s, %s, 160" % (sA, sA))
    I("v_add_u32 %s, %s, %s" % (aOWw, sA, aOWw))
    I("v_mul_u32_u24 %s, 160, %s" % (aST2r, vL7)); I("v_add_u32 %s, %s, %s" % (aOWr, aST2r, vS16))
    I("s_mul_i32 %s, %s, %d" % (sL1m, sW4, 2112))
common_pc()
I("s_cmp_ge_u32 %s, 4" % sW)
br("s_cbranch_scc1 L_pc_hi")
I("s_mul_i32 %s, %s, %d" % (sL1m, sW4, 2112))
I("s_lshl_b32 %s, %s, 7" % (sB, sW))
I("s_lshl3_add_u32 %s, %s, %s" % (sA, sFS, sJ)); I("s_lshl_b32 %s, %s, 10" % (sA, sA)); I("s_add_u32 %s, %s, %s" % (sA, sA, sB)); I("s_add_u32 %s, %s, 0x%x" % (sHFp, sA, WS_HF))
I("s_lshl2_add_u32 %s, %s, %s" % (sA, sJ, sW)); I("s_lshl_b32 %s, %s, 12" % (sA, sA)); I("s_lshl_b32 %s, %s, 7" % (sB, sH))
I("s_add_u32 %s, %s, %s" % (sA, sA, sB)); I("s_add_u32 %s, %s, 0x%x" % (sH3p, sA, WS_H3))
I("v_mul_u32_u24 %s, 2752, %s" % (oGU, t14)); I("v_add_u32 %s, %s, %s" % (oGU, oGU, t13))
I("s_lshl3_add_u32 %s, %s, %s" % (sA, sJ, sW4)); I("s_mul_i32 %s, %s, %d" % (sL1a, sA, 8*2752)); I("s_lshl_b32 %s, %s, 7" % (sB, sFS)); I("s_add_u32 %s, %s, %s" % (sL1a, sL1a, sB))
I("s_cmp_lt_u32 %s, 22" % sFS); I("s_cselect_b32 %s, %s, 0x7f000000" % (sL1a, sL1a))
I("s_mul_i32 %s, %s, %d" % (sA, sW, 16*1056)); I("s_add_u32 %s, %s, %d" % (sA, sA, CKV))
I("v_add_u32 %s, %s, %s" % (aQKa, sA, t10)); I("v_add_u32 %s, %d, %s" % (aQKb, 64*1056, aQKa))
I("v_mul_u32_u24 %s, 544, %s" % (aQr, vN)); I("v_add_u32 %s, %s, %s" % (aQr, aQr, vS16))
I("v_mov_b32 %s, %s" % (aMXr, t13))
I("s_lshl_b32 %s, %s, 2" % (sA, sW)); I("v_add_u32 %s, %s, %s" % (aMXw, sA, aMXr))
I("v_mul_u32_u24 %s, 288, %s" % (aPw, vL7)); I("v_add_u32 %s, %s, %s" % (aPw, aPw, vS16)); I("v_lshl_add_u32 %s, %s, 3, %s" % (aPw, t9, aPw))
I("s_lshl_b32 %s, %s, 6" % (sA, sW)); I("v_add_u32 %s, %s, %s" % (aPw, sA, aPw))
I("v_mul_u32_u24 %s, 1056, %s" % (aTrF, t8)); I("v_lshl_add_u32 %s, %s, 9, %s" % (aTrF, vC, aTrF)); I("v_lshl_add_u32 %s, %s, 3, %s" % (aTrF, vB, aTrF))
I("s_lshl_b32 %s, %s, 5" % (sA, sW4)); I("s_add_u32 %s, %s, %d" % (sA, sA, GI)); I("v_add_u32 %s, %s, %s" % (aTrF, sA, aTrF))
I("v_mov_b32 %s, 0" % aTrWD)
I("v_mul_u32_u24 %s, 160, %s" % (aHBr, vN)); I("v_add_u32 %s, %s, %s" % (aHBr, aHBr, vS16))
if PF:
    flush(True)
    I("s_mov_b64 exec, 0")
    for w in range(3):
        I("s_cmp_eq_u32 %s, %d" % (sW, w)); I("s_cbranch_scc1 L_stub_%d" % w)
    I("s_branch L_stub_3")
    k.label("L_back")
    ex(-1)
br("s_branch L_pc_end")
label("L_pc_hi")
k.vms = [list(l) for l in hi_vms]
I("s_lshl_b32 %s, %s, 8" % (sA, sW4)); I("s_add_u32 %s, %s, %d" % (sA, sA, CKV))
I("v_add_u32 %s, %s, %s" % (aPVa, sA, vTr)); I("v_add_u32 %s, %d, %s" % (aPVb, 64*1056, aPVa))
I("v_mul_u32_u24 %s, 288, %s" % (aPr, vL7)); I("v_add_u32 %s, %s, %s" % (aPr, aPr, vS16))
I("v_mov_b32 %s, %s" % (aMXr_h, t13))
I("v_lshl_add_u32 %s, %s, 6, %s" % (oH2p, t9, vS16)); I("v_lshl_add_u32 %s, %s, 17, %s" % (oH2p, vL7, oH2p))
I("s_lshl_b32 %s, %s, 20" % (sA, sHG)); I("s_lshl_b32 %s, %s, 15" % (sB, sW4)); I("s_add_u32 %s, %s, %s" % (sA, sA, sB))
I("s_lshl_b32 %s, %s, 8" % (sB, sTile)); I("s_add_u32 %s, %s, %s" % (sA, sA, sB)); I("s_add_u32 %s, %s, 0x%x" % (sA, sA, WS_H2))
I("v_add_u32 %s, %s, %s" % (oH2p, sA, oH2p))
I("s_lshl_b32 %s, %s, 16" % (sA, sW4)); I("s_add_u32 %s, %s, %s" % (sUV, sD, sA))
I("v_lshlrev_b32 %s, 10, %s" % (oHF, vL7)); I("v_bfe_u32 %s, %s, 3, 2" % (t12, vL)); I("v_lshl_add_u32 %s, %s, 4, %s" % (oHF, t12, oHF))
I("v_lshl_add_u32 %s, %s, 7, %s" % (oHF, t11, oHF))
I("s_lshl_b32 %s, %s, 13" % (sC, sFS)); I("s_lshr_b32 %s, %s, 1" % (sA, sW4)); I("s_lshl_b32 %s, %s, 6" % (sB, sA)); I("s_add_u32 %s, %s, %s" % (sC, sC, sB))
I("s_and_b32 %s, %s, 1" % (sB, sW)); I("s_lshl_b32 %s, %s, 8" % (sSpin, sB)); I("s_add_u32 %s, %s, %s" % (sC, sC, sSpin)); I("s_add_u32 %s, %s, 0x%x" % (sC, sC, WS_HF))
I("v_add_u32 %s, %s, %s" % (oHF, sC, oHF))
I("s_mul_i32 %s, %s, 160" % (sC, sA)); I("s_lshl_b32 %s, %s, 6" % (sB, sB)); I("s_add_u32 %s, %s, %s" % (sC, sC, sB))
I("v_lshl_add_u32 %s, %s, 3, %s" % (aHBw, t8, sC))
I("v_mov_b32 %s, %s" % (vSC, sRS))
I("v_lshl_add_u32 %s, %s, 2, %s" % (oOut, vB, vS)); I("v_lshl_add_u32 %s, %s, 9, %s" % (oOut, vC, oOut))
I("s_lshl_b32 %s, s2, 4" % sA); I("v_add_lshl_u32 %s, %s, %s, 1" % (oOut, oOut, sA))
I("s_lshl_b32 %s, s2, 12" % sA); I("s_add_u32 %s, %s, 0x%x" % (sA, sA, WS_H3)); I("v_add_u32 %s, %s, %s" % (oH3, sA, vL16))
I("v_mov_b32 %s, 0" % oGU)
for r in range(4): I("v_mov_b32 %s, %s" % (V(XF + r), sOnes))
ckv_rows(R1, 32)
stamp("ckiss")
k.wait_vm("ckA")
label("L_pc_end")
lgkm(0)
I("s_barrier")
stamp("Ha")
def qk_reads(half):
    for kk in range(16):
        I("ds_read_b128 %s, %s offset:%d" % (V(FR + 64*half + 4*kk, 4), aQKb if half else aQKa, 64*kk))
def pv_reads(q):
    for t in range(8):
        for kp in range(4):
            I("ds_read_b64_tr_b16 %s, %s offset:%d" % (V(FR + 16*t + 4*kp + 2*q, 2), aPVb if q else aPVa, 16*kp*1056 + 32*t))
def ld_h1(tag):
    for u in range(2):
        I("buffer_load_dwordx4 %s, %s, %s, 0 offen offset:%d sc1" % (V(ACC + 4*u, 4), oH1, WS, 2048*u), tag=tag)
def gu_loads():
    I("s_add_u32 m0, %s, %d" % (sL1m, GI))
    I("s_add_u32 %s, %s, %d" % (sA, sL1a, 2*2752))
    I("buffer_load_dwordx4 %s, %s, %s offen nt lds" % (oGU, GA, sL1a), tag="l1")
    I("s_add_u32 m0, m0, 1056")
    I("buffer_load_dwordx4 %s, %s, %s offen nt lds" % (oGU, GA, sA), tag="l1")
    I("s_add_u32 m0, %s, %d" % (sL1m, UI))
    I("buffer_load_dwordx4 %s, %s, %s offen nt lds" % (oGU, UP, sL1a), tag="l1")
    I("s_add_u32 m0, m0, 1056")
    I("buffer_load_dwordx4 %s, %s, %s offen nt lds" % (oGU, UP, sA), tag="l1")
def uv_loads():
    I("s_lshl1_add_u32 m0, %s, %d" % (sL1m, WUVI))
    for r in range(4):
        I("buffer_load_dwordx4 %s, %s, %s offen nt lds" % (vF16, WUV, sUV), tag="l1")
        if r < 3: I("s_add_u32 m0, m0, 1056"); I("s_add_u32 %s, %s, 8192" % (sUV, sUV))
def l2_loads():
    I("s_add_u32 m0, %s, %d" % (sW2112, WOI))
    I("buffer_load_dwordx4 %s, %s, 0 offen nt lds" % (oWO, WO), tag="l2")
    I("s_add_u32 m0, m0, 32")
    I("s_lshr_b32 %s, %s, 1" % (sB, sW2112))
    I("buffer_load_dwordx4 %s, %s, 0 offen offset:1024 nt lds" % (oWO, WO), tag="l2")
    I("s_add_u32 m0, %s, %d" % (sB, WDI))
    I("buffer_load_dwordx4 %s, %s, 0 offen nt lds" % (oWD, DN), tag="l2")
def after_h1():
    I("v_mov_b32 %s, 0" % vA)
    I("ds_read_b32 %s, %s offset:%d" % (vB, vA, LOC))
    role(lambda: qk_reads(0), lambda: pv_reads(0), "fa")
    if L1_AT == 0:
        lgkm(0)
        I("s_barrier")
        stamp("Hm")
        role(gu_loads, uv_loads, "hm")
gather("h1", ld_h1, check64([ACC, ACC + 4]), after_first=after_h1)
I("ds_write_b64 %s, %s offset:%d" % (aQw, V(ACC + 2, 2), Q_))
I("ds_write_b64 %s, %s offset:%d" % (aQw, V(ACC + 6, 2), Q_ + 8*544))
lgkm(0)
I("v_readfirstlane_b32 %s, %s" % (sLoc, vB))
I("s_barrier")
stamp("B3")
I("s_cmp_ge_u32 %s, 4" % sW)
br("s_cbranch_scc1 L_B_hi")
for ks in range(8):
    I("ds_read_b128 %s, %s offset:%d" % (V(QB + 4*ks, 4), aQr, Q_ + 64*ks))
D1a, D2a, D1b, D2b = ACC, ACC + 4, ACC + 8, ACC + 12
border = []
for ks in range(8): border += [ks, 8 + ks]
def rdb(i): I("ds_read_b128 %s, %s offset:%d" % (V(FR + 64 + 4*border[i], 4), aQKb, 64*border[i]))
for i in range(6): rdb(i)
if L1_AT == 1: gu_loads()
if L2_AT == 2: l2_loads()
nb = 6
for ks in range(8):
    k.lgkm(7 - ks + nb)
    mfma(D1a, FR + 4*ks, QB + 4*ks, "0" if ks == 0 else D1a)
    mfma(D2a, FR + 32 + 4*ks, QB + 4*ks, "0" if ks == 0 else D2a)
    if nb < 16 and 7 - ks + nb < 14: rdb(nb); nb += 1
    if nb < 16 and ks >= 5: rdb(nb); nb += 1
while nb < 16: rdb(nb); nb += 1
for ks in range(8):
    k.lgkm(14 - 2*ks)
    mfma(D1b, FR + 64 + 4*ks, QB + 4*ks, "0" if ks == 0 else D1b)
    mfma(D2b, FR + 96 + 4*ks, QB + 4*ks, "0" if ks == 0 else D2b)
Sx = ACC + 16; mx, mt = ACC + 24, ACC + 25
for r in range(4): I("v_add_f32_dpp %s, %s, %s row_ror:8 row_mask:0xf bank_mask:0x3" % (V(Sx + r), V(D2a + r), V(D1a + r)))
for r in range(4): I("v_add_f32_dpp %s, %s, %s row_ror:8 row_mask:0xf bank_mask:0xc" % (V(Sx + r), V(D1b + r), V(D2b + r)))
I("v_max3_f32 %s, %s, %s, %s" % (V(mx), V(Sx), V(Sx + 1), V(Sx + 2)))
I("v_max_f32 %s, %s, %s" % (V(mx), V(mx), V(Sx + 3)))
I("v_max_f32_dpp %s, %s, %s row_ror:8%s" % (V(mx), V(mx), V(mx), DPP))
for sw in ("16", "32"):
    I("v_mov_b32 %s, %s" % (V(mt), V(mx)))
    I("v_permlane%s_swap_b32 %s, %s" % (sw, V(mx), V(mt)))
    I("v_max_f32 %s, %s, %s" % (V(mx), V(mx), V(mt)))
I("s_mov_b64 exec, 0xff")
I("ds_write_b32 %s, %s offset:%d" % (aMXw, V(mx), MX))
ex(-1)
lgkm(0)
I("s_barrier")
stamp("B4a")
I("ds_read_b128 %s, %s offset:%d" % (V(ACC, 4), aMXr, MX))
lgkm(0)
I("v_max3_f32 %s, %s, %s, %s" % (V(mx), V(ACC), V(ACC + 1), V(ACC + 2)))
I("v_max_f32 %s, %s, %s" % (V(mx), V(mx), V(ACC + 3)))
for r in range(4): I("v_sub_f32 %s, %s, %s" % (V(Sx + r), V(Sx + r), V(mx)))
for r in range(4): I("v_exp_f32 %s, %s" % (V(Sx + r), V(Sx + r)))
I("v_cvt_pk_bf16_f32 %s, %s, %s" % (V(ACC), V(Sx), V(Sx + 1)))
I("v_cvt_pk_bf16_f32 %s, %s, %s" % (V(ACC + 1), V(Sx + 2), V(Sx + 3)))
I("ds_write_b64 %s, %s offset:%d" % (aPw, V(ACC, 2), P_))
lgkm(0)
I("s_barrier")
stamp("B4b")
HBF = QB
GUF = QB + 8; UVF = QB + 16; H = QB + 24; HF_ = QB + 32; OF = QB + 40
Z = ACC
for r in range(8): I("v_mov_b32 %s, 0" % V(HBF + r))
I("s_cmp_ge_u32 %s, 22" % sFS)
br("s_cbranch_scc1 L_B_end")
I("v_mov_b32 %s, 0" % vA); I("v_mov_b32 %s, 1" % vB)
k.wait_vm("l1")
ex(1)
I("ds_add_u32 %s, %s offset:%d" % (vA, vB, CNT))
ex(-1)
I("s_mov_b32 %s, 0" % sSpin)
k.label("L_cw")
I("ds_read_b32 %s, %s offset:%d" % (vB, vA, CNT))
I("s_add_u32 %s, %s, 1" % (sSpin, sSpin))
I("s_cmp_gt_u32 %s, %d" % (sSpin, SPIN_MAX))
I("s_cbranch_scc1 L_END")
lgkm(0)
I("v_cmp_ne_u32 vcc, 4, %s" % vB)
I("s_cbranch_vccnz L_cw")
for z in range(4): I("ds_read_b64_tr_b16 %s, %s offset:%d" % (V(GUF + 2*z, 2), aTrF, 128*z))
for z in range(4): I("ds_read_b64_tr_b16 %s, %s offset:%d" % (V(UVF + 2*z, 2), aTrF, UI - GI + 128*z))
I("v_mov_b32 %s, %s" % (V(ACC + 8), sT)); I("v_mov_b32 %s, %s" % (V(ACC + 9), sT2))
k.lgkm(4)
mfma(ACC, GUF, XF, "0"); mfma(ACC + 12, GUF, ONE, "0")
mfma(ACC, GUF + 4, XF + 4, ACC); mfma(ACC + 12, GUF + 4, ONE, ACC + 12)
lgkm(0)
mfma(ACC + 4, UVF, XF, "0"); mfma(ACC + 16, UVF, ONE, "0")
mfma(ACC + 4, UVF + 4, XF + 4, ACC + 4); mfma(ACC + 16, UVF + 4, ONE, ACC + 16)
for r in range(8): I("v_fmac_f32 %s, %s, %s" % (V(ACC + r), V(ACC + 12 + r), vNM))
I("v_cvt_pk_bf16_f32 %s, %s, %s" % (V(GR + 2), V(ACC), V(ACC + 1)))
I("v_cvt_pk_bf16_f32 %s, %s, %s" % (V(GR + 3), V(ACC + 2), V(ACC + 3)))
I("v_cvt_pk_bf16_f32 %s, %s, %s" % (V(ACC + 10), V(ACC + 4), V(ACC + 5)))
I("v_cvt_pk_bf16_f32 %s, %s, %s" % (V(ACC + 11), V(ACC + 6), V(ACC + 7)))
ex(mkJ)
lstore(["buffer_store_dwordx4 %s, %s, %s, %s offen" % (V(GR, 4), oPub, WS, sHFp), "buffer_store_dwordx4 %s, %s, %s, %s offen offset:512" % (V(ACC + 8, 4), oPub, WS, sHFp)])
ex(-1)
stamp("F1pub")
br("s_branch L_B_end")
label("L_B_hi")
if L1_AT == 1: uv_loads()
if L2_AT == 2: l2_loads()
I("buffer_load_ushort %s, %s, %s, 0 offen" % (vX, oOut, X), tag="l1")
if knob("PT25", 1):
    I("s_cmp_lg_u32 %s, 4" % sW)
    br("s_cbranch_scc1 L_pt")
    I("v_lshlrev_b32 %s, 7, %s" % (vA, vL))
    I("s_sub_u32 %s, %s, 512" % (sB, sH25p))
    I("s_mov_b64 exec, 0xff")
    I("buffer_load_dword %s, %s, %s, %s offen sc1" % (vB, vA, WS, sB), tag="l1")
    I("s_lshl_b32 %s, s2, 12" % sB); I("s_add_u32 %s, %s, 0x%x" % (sB, sB, WS_H3))
    I("s_cmp_lt_u32 s2, 32"); I("s_cselect_b32 %s, %s, 0x7f000000" % (sB, sB))
    I("s_mov_b32 exec_lo, -1")
    I("buffer_load_dword %s, %s, %s, %s offen sc1" % (vC, vA, WS, sB), tag="l1")
    ex(-1)
    label("L_pt")
pv_reads(1)
O = QB; PF_ = QB + 32
G = [ACC + 4*p for p in range(4)]
for p in range(4): I("v_mov_b32 %s, %s" % (V(G[p] + 3), sT))
I("s_movk_i32 %s, 0x4000" % sA)
I("s_barrier")
I("ds_read_b128 %s, %s offset:%d" % (V(Sx, 4), aMXr_h, MX))
lgkm(0)
I("v_max3_f32 %s, %s, %s, %s" % (V(G[0] + 2), V(Sx), V(Sx + 1), V(Sx + 2)))
I("v_max_f32 %s, %s, %s" % (V(G[0] + 2), V(G[0] + 2), V(Sx + 3)))
I("v_mov_b32 %s, %s" % (V(G[2] + 2), V(G[0] + 2)))
I("s_barrier")
for kp in range(4):
    I("ds_read_b128 %s, %s offset:%d" % (V(PF_ + 4*kp, 4), aPr, P_ + 64*kp))
def epi(p):
    ops = []
    for r in range(4): ops.append("v_cndmask_b32 %s, %s, %s, %s" % (V(Sx + r), V(O + 8*p + r), V(O + 8*p + 4 + r), sHi))
    ops.append("v_cvt_pk_bf16_f32 %s, %s, %s" % (V(G[p]), V(Sx), V(Sx + 1)))
    ops.append("v_cvt_pk_bf16_f32 %s, %s, %s" % (V(G[p] + 1), V(Sx + 2), V(Sx + 3)))
    ops.append(("buffer_store_dwordx4 %s, %s, %s, %s offen offset:%d sc1" % (V(G[p], 4), oH2p, WS, sA if p >= 2 else "0", 128*(p & 1)), "st2"))
    return ops
LS = ACC + 20
fill = []
def emit_fill(n):
    for _ in range(n):
        if not fill: return
        o = fill.pop(0)
        if isinstance(o, tuple): I(o[0], tag=o[1])
        else: I(o)
order = [0, 2, 1, 3]
for idx, p in enumerate(order):
    for kp in range(4):
        if idx == 0: k.lgkm(3 - kp)
        for e in range(2):
            t = 2*p + e
            mfma(O + 4*t, FR + 16*t + 4*kp, PF_ + 4*kp, "0" if kp == 0 else O + 4*t)
            if idx == 0 and e == 1: mfma(LS, XF, PF_ + 4*kp, "0" if kp == 0 else LS)
            if idx == 2 and kp == 0 and e == 1: fill += ["v_mov_b32 %s, %s" % (V(G[1] + 2), V(LS)), "v_mov_b32 %s, %s" % (V(G[3] + 2), V(LS))]
            if idx > 0 and kp == 2 and e == 1:
                assert not fill
                fill[:0] = epi(order[idx - 1])
            emit_fill(2)
emit_fill(100)
for o in epi(order[-1]): fill.append(o)
emit_fill(100)
stamp("Bpub")
k.wait_vm0()
stamp("st2ack")
label("L_B_end")
I("s_barrier")
stamp("B5")
def ld_h2(tag):
    for u in range(2):
        I("buffer_load_dwordx4 %s, %s, %s, 0 offen offset:%d sc1" % (V(H + 4*u, 4), oH2, WS, 128*u), tag=tag)
def chk_h2():
    I("v_cmp_ne_u32 vcc, %s, %s" % (sT, V(H + 3)))
    I("v_cmp_ne_u32 %s, %s, %s" % (sM, sT, V(H + 7)))
    I("s_or_b64 vcc, vcc, %s" % sM)
def after_h2():
    for z in range(4): I("ds_read_b64_tr_b16 %s, %s offset:%d" % (V(UVF + 2*z, 2), aTrA, WUVI + 256*z))
    if L2_AT == 0:
        I("s_barrier")
        l2_loads()
gather("h2", ld_h2, chk_h2, after_first=after_h2)
mw, wt, tt = ACC + 8, ACC + 9, ACC + 10
I("v_max_f32_dpp %s, %s, %s row_ror:8%s" % (V(mw), V(H + 2), V(H + 2), DPP))
for u in range(2):
    I("v_lshlrev_b32 %s, 16, %s" % (V(Z + 4*u), V(H + 4*u)))
    I("v_and_b32 %s, 0xffff0000, %s" % (V(Z + 4*u + 1), V(H + 4*u)))
for n_, sw in enumerate(("16", "32")):
    I("v_mov_b32 %s, %s" % (V(tt), V(mw)))
    I("v_lshlrev_b32 %s, 16, %s" % (V(Z + 4*n_ + 2), V(H + 4*n_ + 1)))
    I("v_and_b32 %s, 0xffff0000, %s" % (V(Z + 4*n_ + 3), V(H + 4*n_ + 1)))
    I("v_permlane%s_swap_b32 %s, %s" % (sw, V(mw), V(tt)))
    I("v_max_f32 %s, %s, %s" % (V(mw), V(mw), V(tt)))
I("v_sub_f32 %s, %s, %s" % (V(wt), V(H + 2), V(mw)))
I("v_exp_f32 %s, %s" % (V(wt), V(wt)))
for r in range(8): I("v_mul_f32 %s, %s, %s" % (V(Z + r), V(Z + r), V(wt)))
lw = mw + 1
I("v_mul_f32 %s, %s, %s" % (V(lw), V(H + 6), V(wt)))
for r in range(4): I("v_permlane16_swap_b32 %s, %s" % (V(Z + r), V(Z + 4 + r)))
for r in range(4): I("v_add_f32 %s, %s, %s" % (V(Z + r), V(Z + r), V(Z + 4 + r)))
I("v_add_f32_dpp %s, %s, %s row_ror:8%s" % (V(lw), V(lw), V(lw), DPP))
for r in range(2): I("v_permlane32_swap_b32 %s, %s" % (V(Z + r), V(Z + 2 + r)))
I("v_mov_b32 %s, %s" % (V(tt), V(lw)))
for r in range(2): I("v_add_f32 %s, %s, %s" % (V(Z + r), V(Z + r), V(Z + 2 + r)))
I("v_permlane16_swap_b32 %s, %s" % (V(lw), V(tt)))
for r in range(2): I("v_add_f32_dpp %s, %s, %s row_ror:8%s" % (V(Z + r), V(Z + r), V(Z + r), DPP))
I("v_add_f32 %s, %s, %s" % (V(lw), V(lw), V(tt)))
I("v_cvt_pk_bf16_f32 %s, %s, %s" % (V(Z), V(Z), V(Z + 1)))
I("v_mov_b32 %s, %s" % (V(tt), V(lw)))
ex(mk8)
I("ds_write_b32 %s, %s offset:%d" % (aOWw, V(Z), OW))
ex(-1)
I("v_permlane32_swap_b32 %s, %s" % (V(lw), V(tt)))
I("v_add_f32 %s, %s, %s" % (V(lw), V(lw), V(tt)))
ex(1)
I("ds_write_b64 %s, %s offset:%d" % (aOWw, V(mw, 2), OW + 128))
ex(-1)
lgkm(0)
I("s_barrier")
stamp("B6")
I("ds_read_b64 %s, %s offset:%d" % (V(mw, 2), aST2r, OW + 128))
I("ds_read_b128 %s, %s offset:%d" % (V(OF, 4), aOWr, OW))
I("ds_read_b128 %s, %s offset:%d" % (V(OF + 4, 4), aOWr, OW + 64))
if L2_AT == 1: l2_loads()
k.lgkm(2)
mb_ = ACC + 11; e_ = ACC + 12
I("v_max_f32_dpp %s, %s, %s row_ror:4%s" % (V(mb_), V(mw), V(mw), DPP))
I("v_max_f32_dpp %s, %s, %s row_ror:2%s" % (V(mb_), V(mb_), V(mb_), DPP))
lgkm(0)
mfma(ACC, UVF, OF, "0")
mfma(ACC, UVF + 4, OF + 4, ACC)
I("v_sub_f32 %s, %s, %s" % (V(e_), V(mw), V(mb_)))
I("v_exp_f32 %s, %s" % (V(e_), V(e_)))
I("v_mul_f32 %s, %s, %s" % (V(lw), V(lw), V(e_)))
I("v_add_f32_dpp %s, %s, %s row_ror:4%s" % (V(lw), V(lw), V(lw), DPP))
I("v_add_f32_dpp %s, %s, %s row_ror:2%s" % (V(lw), V(lw), V(lw), DPP))
I("v_rcp_f32 %s, %s" % (V(lw), V(lw)))
I("v_mul_f32 %s, %s, %s" % (V(e_), V(e_), V(lw)))
for r in range(4): I("v_mul_f32 %s, %s, %s" % (V(ACC + r), V(ACC + r), V(e_)))
red_j((4, 2))
I("v_cvt_pk_bf16_f32 %s, %s, %s" % (V(GR + 2), V(ACC), V(ACC + 1)))
I("v_cvt_pk_bf16_f32 %s, %s, %s" % (V(GR + 3), V(ACC + 2), V(ACC + 3)))
ex(mk2)
lstore(["buffer_store_dwordx4 %s, %s, %s, %s offen" % (V(GR, 4), oPub, WS, sH25p)])
ex(-1)
stamp("Cpub")
I("s_cmp_ge_u32 %s, 4" % sW)
br("s_cbranch_scc1 L_f2")
I("s_add_u32 %s, %s, 4096" % (sC, sH25g))
k.wait_vm0()
def ld_h25(tag):
    I("buffer_load_dwordx4 %s, %s, %s, %s offen sc1" % (V(H, 4), vL16, WS, sH25g), tag=tag)
    I("buffer_load_dwordx4 %s, %s, %s, %s offen sc1" % (V(H + 4, 4), vL16, WS, sC), tag=tag)
WOF = FR; WDF = FR + 16; CPF = FR + 24
def after_h25():
    I("s_barrier")
    for z in range(8): I("ds_read_b64_tr_b16 %s, %s offset:%d" % (V(WOF + 2*z, 2), aTrA, WOI + 128*z))
    for z in range(4): I("ds_read_b64_tr_b16 %s, %s offset:%d" % (V(WDF + 2*z, 2), aTrF, WDI - GI + 128*z))
gather("h25", ld_h25, check64([H, H + 4]), after_first=after_h25)
I("ds_write_b64 %s, %s offset:%d" % (aCPw, V(H + 2, 2), CP))
I("ds_write_b64 %s, %s offset:%d" % (aCPw, V(H + 6, 2), CP + 4*576))
lgkm(0)
I("s_barrier")
stamp("B7")
for ks in range(4):
    I("ds_read_b128 %s, %s offset:%d" % (V(CPF + 4*ks, 4), aCPr, CP + 64*ks))
I("s_cmp_ge_u32 %s, 22" % sFS)
br("s_cbranch_scc1 L_d_nof")
ex(mk2)
I("ds_read_b128 %s, %s offset:%d" % (V(HBF, 4), aHBr, HB))
I("ds_read_b128 %s, %s offset:%d" % (V(HBF + 4, 4), aHBr, HB + 64))
ex(-1)
label("L_d_nof")
lgkm(0)
for ks in range(4): mfma(ACC, WOF + 4*ks, CPF + 4*ks, "0" if ks == 0 else ACC)
for ks in range(2): mfma(ACC, WDF + 4*ks, HBF + 4*ks, ACC)
red_j((8, 4, 2))
publish(sH3p)
stamp("Dpub")
br("s_branch L_OUT")
label("L_f2")
def ld_hf(tag):
    for u in range(2):
        I("buffer_load_dwordx4 %s, %s, %s, 0 offen offset:%d sc1" % (V(HF_ + 4*u, 4), oHF, WS, 512*u), tag=tag)
ld_hf("hf")
k.wait_vm("l2")
I("s_barrier")
I("s_cmp_ge_u32 %s, 22" % sFS)
br("s_cbranch_scc1 L_b7")
gather("hf", ld_hf, check64([HF_, HF_ + 4]), issued=True)
for u in range(2):
    for p in range(2):
        I("v_lshlrev_b32 %s, 16, %s" % (V(Z + 4*u + 2*p), V(HF_ + 4*u + 2 + p)))
        I("v_and_b32 %s, 0xffff0000, %s" % (V(Z + 4*u + 2*p + 1), V(HF_ + 4*u + 2 + p)))
for ctl in ("quad_perm:[1,0,3,2]", "quad_perm:[2,3,0,1]", "row_half_mirror"):
    for r in range(8): I("v_add_f32_dpp %s, %s, %s %s%s" % (V(Z + r), V(Z + r), V(Z + r), ctl, DPP))
I("v_mul_f32 %s, 0xbfb8aa3b, %s" % (V(Z + 8), vSC))
for r in range(4): I("v_mul_f32 %s, %s, %s" % (V(Z + r), V(Z + 8), V(Z + r)))
for r in range(4): I("v_exp_f32 %s, %s" % (V(Z + r), V(Z + r)))
for r in range(4): I("v_mul_f32 %s, %s, %s" % (V(Z + 4 + r), vSC, V(Z + 4 + r)))
for r in range(4): I("v_add_f32 %s, 1.0, %s" % (V(Z + r), V(Z + r)))
for r in range(4): I("v_rcp_f32 %s, %s" % (V(Z + r), V(Z + r)))
for r in range(4): I("v_mul_f32 %s, %s, %s" % (V(Z + r), V(Z + r), V(Z + 4 + r)))
I("v_cvt_pk_bf16_f32 %s, %s, %s" % (V(Z), V(Z), V(Z + 1)))
I("v_cvt_pk_bf16_f32 %s, %s, %s" % (V(Z + 1), V(Z + 2), V(Z + 3)))
ex32(0x01010101)
I("ds_write_b64 %s, %s offset:%d" % (aHBw, V(Z, 2), HB))
ex(-1)
label("L_b7")
lgkm(0)
I("s_barrier")
stamp("B7")
I("s_cmp_lg_u32 %s, 4" % sW)
br("s_cbranch_scc1 L_OUT")
I("s_cmp_ge_u32 s2, 32")
br("s_cbranch_scc1 L_OUT")
H = FR
def ld_h3(tag):
    for u in range(4):
        I("buffer_load_dwordx4 %s, %s, %s, 0 offen offset:%d sc1" % (V(H + 4*u, 4), oH3, WS, 1024*u), tag=tag)
I("v_lshlrev_b32 %s, 16, %s" % (vX, vX))
gather("h3", ld_h3, check64([H, H + 4, H + 8, H + 12]))
for u in range(4):
    for p in range(2):
        I("v_lshlrev_b32 %s, 16, %s" % (V(Z + 4*u + 2*p), V(H + 4*u + 2 + p)))
        I("v_and_b32 %s, 0xffff0000, %s" % (V(Z + 4*u + 2*p + 1), V(H + 4*u + 2 + p)))
for r in range(4):
    I("v_add_f32 %s, %s, %s" % (V(Z + r), V(Z + r), V(Z + 4 + r)))
    I("v_add_f32 %s, %s, %s" % (V(Z + 8 + r), V(Z + 8 + r), V(Z + 12 + r)))
for r in range(4): I("v_add_f32 %s, %s, %s" % (V(Z + r), V(Z + r), V(Z + 8 + r)))
I("v_permlane16_swap_b32 %s, %s" % (V(Z), V(Z + 1)))
I("v_permlane16_swap_b32 %s, %s" % (V(Z + 2), V(Z + 3)))
I("v_add_f32 %s, %s, %s" % (V(Z), V(Z), V(Z + 1)))
I("v_add_f32 %s, %s, %s" % (V(Z + 2), V(Z + 2), V(Z + 3)))
I("v_permlane32_swap_b32 %s, %s" % (V(Z), V(Z + 2)))
I("v_add_f32 %s, %s, %s" % (V(Z), V(Z), V(Z + 2)))
I("v_add_f32_dpp %s, %s, %s row_ror:8%s" % (V(Z), V(Z), V(Z), DPP))
I("v_add_f32 %s, %s, %s" % (V(Z), V(Z), vX))
I("v_cvt_pk_bf16_f32 %s, %s, %s" % (V(Z), V(Z), V(Z)))
ex(mk8)
I("buffer_store_short %s, %s, %s, 0 offen" % (V(Z), oOut, OUT), tag="st")
I("s_cmp_lg_u32 s2, 0")
br("s_cbranch_scc1 L_OUT")
ex(1)
I("buffer_store_dword %s, %s, %s, 0 offen sc1" % (V(GR), vL16, WS), tag="st")
label("L_OUT")
if STAMP:
    ex(-1)
    stamp("end")
    flush(True)
    I("s_lshl_b32 %s, s2, 10" % sA); I("s_lshl_b32 %s, %s, 7" % (sB, sW)); I("s_add_u32 %s, %s, %s" % (sA, sA, sB)); I("s_add_u32 %s, %s, 0x%x" % (sA, sA, WS_STAMP))
    I("v_lshlrev_b32 %s, 2, %s" % (vA, vL))
    I("s_mov_b32 exec_lo, -1"); I("s_mov_b32 exec_hi, 0")
    I("buffer_store_dword %s, %s, %s, %s offen" % (vST, vA, WS, sA))
k.label("L_END")
I("s_endpgm")
k.raw("L_CODE_END:")
k.raw('''.section .rodata,"a"
.p2align 6
.amdhsa_kernel %s
  .amdhsa_next_free_vgpr 256
  .amdhsa_next_free_sgpr 102
  .amdhsa_accum_offset 256
  .amdhsa_group_segment_fixed_size 0
  .amdhsa_kernarg_size 104
  .amdhsa_user_sgpr_count 2
  .amdhsa_user_sgpr_kernarg_segment_ptr 1
  .amdhsa_system_sgpr_workgroup_id_x 1
  .amdhsa_float_denorm_mode_32 3
.end_amdhsa_kernel''' % KN)
import subprocess, re
def addrs(lines):
    open("_g.s", "w").write("\n".join(lines) + "\n")
    subprocess.run(["clang", "-x", "assembler", "-target", "amdgcn-amd-amdhsa", "-mcpu=gfx950", "-c", "_g.s", "-o", "_g.o"], check=True)
    d = subprocess.run(["llvm-objdump", "-d", "--mcpu=gfx950", "_g.o"], capture_output=True, text=True).stdout
    return [int(m.group(1), 16) for m in re.finditer(r"// ([0-9A-F]{12}):", d)]
lines = k.text().split("\n")
if PF:
    NST = 8
    tmp = list(lines)
    e = tmp.index("L_CODE_END:")
    tmp[e:e] = ["L_stub_%d:" % i for i in range(NST)] + ["    s_endpgm"]
    ad = addrs(tmp)
    idx = [i for i, l in enumerate(lines) if l.startswith("    ") and not l.strip().startswith(";")]
    idx = idx[:k.count]
    first = ad[idx.index(lines.index("L_pc_end:") + 1)]
    start = (first // 1024 + 1) * 1024
    ins = []; shift = 0; nxt = start
    for n, li in enumerate(idx):
        if ad[n] + shift >= nxt and len(ins) < NST:
            ins.append(li); shift += 4; nxt += 1024
    assert ad[len(idx) - 1] + shift < nxt + 0, "need more stubs"
    for j in range(len(ins) - 1, -1, -1):
        tgt = "L_stub_%d" % (j + 4) if j + 4 < len(ins) else "L_back"
        lines[ins[j]:ins[j]] = ["L_stub_%d:" % j, "    s_cbranch_execz %s" % tgt]
    assert len(ins) >= 4
open(sys.argv[1], "w").write("\n".join(lines) + ("; STAMPS " + ",".join(names) + "\n" if STAMP else ""))
print("instructions:", k.count, "stamps:", len(names), "lds:", LDS_SIZE, "sgpr:", _s[0], file=sys.stderr)
```

```python
import sys, os, math, struct
from asmlib import Asm
KN = "parallel_sum__compressed_kv_cla__glu_gated_glu__decode_kernel"
def knob(name, d): return int(os.environ.get(name, d))
STAMP = knob("STAMP", 0)
SPIN_MAX = 20000
R0 = knob("R0", 0)
GO = knob("GO", 1)
TLB = 0
LOCAL = knob("LOCAL", 1)
NL = knob("NL", 6)
K_FLY = knob("K_FLY", 40)
K_FLYB = knob("K_FLYB", 40)
L1_AT = knob("L1_AT", 0)
L2_AT = knob("L2_AT", 0)
PF = knob("PF", 1)
PRIO = knob("PRIO", 1)
PT3 = knob("PT3", 1)

WS_H0 = 0x10000; WS_H1 = 0x50000; WS_H25 = 0x70000; WS_HF = 0xb0000; WS_H3 = 0xf0000; WS_H0L = 0x110000; WS_H2 = 0x200000
WS_STAMP = 0x800000; WS_SIZE = 0x10000000
Q_ = 0; P_ = 8704; MX = 11008; OW = 11520; HB = 12864; CP = 0
QP = 16896; XI = QP; CNT = QP + 4608; LOC = CNT + 4
CKV = QP + 4608 + 128
WQI = CKV + 112*1056
WUKI = CKV
WUVI = CKV; WOI = CKV + 16896; GI = CKV + 33792; UI = CKV + 42240; WDI = CKV + 50688
SCR = CKV + 128*1056
LDS_SIZE = SCR + 1024
PF1 = knob('PF1', 0)
CLR = knob('CLR', 4)
SENT = 0x7f817f81
WS_HS = 0x150000
PF2 = knob('PF2', 0)
X, CK, WQ, WUK, WUV, WO, GA, UP, DN, OUT, WS = ["s[%d:%d]" % (4 + 4*k, 7 + 4*k) for k in range(11)]
_s = [48]
def S(n=1):
    if n == 2 and _s[0] & 1: _s[0] += 1
    r = _s[0]; _s[0] += n
    assert _s[0] <= 102
    return "s%d" % r if n == 1 else "s[%d:%d]" % (r, r + 1)
sW = "s3"
sTT = S(2); sT = "s48"; sT2 = "s49"
sM = S(2); sHi = S(2); mk2 = S(2); mk8 = S(2); mkJ = S(2); sPC = S(2); sTX = S(2)
sX8, sI, sJ, sH, sG, sHG, sTile, sFS, sGrp, sW4 = [S() for _ in range(10)]
sA, sB, sC, sD, sSpin, sOnes = [S() for _ in range(6)]
sCKo = S(); sCKm = S()
sHFp, sH25p, sH25g, sH3p, sUV, sWD, sW2112 = [S() for _ in range(7)]
sL1a, sL1m = S(), S()
sLoc, sRS = S(), S()
sTXa, sT2x = ['s' + x for x in sTX[2:-1].split(':')]
STP = [S(2) for _ in range(3)]
_v = [1]
def Vn():
    r = _v[0]; _v[0] += 1
    return "v%d" % r
def V(a, n=1): return "v%d" % a if n == 1 else "v[%d:%d]" % (a, a + n - 1)
vL, vN, vS, vL16, vS16, vL7, vTr, vF16 = [Vn() for _ in range(8)]
vA, vB, vC = Vn(), Vn(), Vn()
aTrA, oPub, oH1, aQw, oH2, aOWw, aOWr, aST2r, oWO, oWD = [Vn() for _ in range(10)]
r0, r1, r2, r3, r4, r5, r6, r7, r8, r9, r10 = [Vn() for _ in range(11)]
vST = Vn()
vSC, vX = Vn(), Vn()
assert _v[0] <= 36, _v[0]
NM = 36
vNM, vRS = V(36), V(37)
XF = 40; GR = 48; ACC = 52; QB = 80; FR = 128
aQKa, aQKb, aQr, aMXw, aMXr, aPw, oOut, aHBr, aTrF, aCPw, aCPr = r0, r1, r2, r3, r4, r5, r6, r7, r8, r9, r10
oGU = V(QB + 40)
aPVa, aPVb, aPr, oH2p, aMXr_h, oHF, aHBw = r0, r1, r2, r3, r4, r5, r6
oHS = vTr

k = Asm()
I = k.I
names = []; pend = []
ONLY = [x for x in os.environ.get("ONLY", "").split(",") if x]
def flush(force=False):
    if not pend: return
    if force: I("s_waitcnt lgkmcnt(0)")
    for (n, p) in pend: I("v_writelane_b32 %s, s%s, %d" % (vST, p[2:].split(":")[0], n))
    pend.clear()
def stamp(name):
    if not STAMP or (ONLY and name not in ONLY): return
    if name not in names: names.append(name)
    if len(pend) == 3: flush(True)
    used = [p for _, p in pend]
    p = [x for x in STP if x not in used][0]
    I("s_memrealtime %s" % p)
    pend.append((names.index(name), p))
def lgkm(n=0):
    k.lgkm(n)
    if n == 0: flush()
def br(text):
    flush(True); I(text)
def label(L):
    flush(True) if not k.dead else pend.clear()
    k.label(L)
def ex(m): I("s_mov_b64 exec, %s" % m)
def ex32(val): I("s_mov_b32 exec_lo, 0x%08x" % val); I("s_mov_b32 exec_hi, 0x%08x" % val)
def mfma(d, a, b, c):
    I("v_mfma_f32_16x16x32_bf16 %s, %s, %s, %s" % (V(d, 4), V(a, 4), V(b, 4), V(c, 4) if isinstance(c, int) else c))
DPP = " row_mask:0xf bank_mask:0xf"
def setmask(mk, val):
    a_, b_ = mk[2:-1].split(":")
    I("s_mov_b32 s%s, 0x%08x" % (a_, val)); I("s_mov_b32 s%s, 0x%08x" % (b_, val))
def code_prefetch():
    if not PF: return
    lo_, hi_ = sPC[2:-1].split(":")
    L = k.newlabel("L_pc")
    I("s_getpc_b64 %s" % sPC)
    k.raw(L + ":")
    I("s_sub_u32 s%s, s%s, %s - %s" % (lo_, lo_, L, KN))
    I("s_subb_u32 s%s, s%s, 0" % (hi_, hi_))
    I("s_lshl2_add_u32 %s, %s, %s" % (sL1a, sI, sW))
    I("s_add_u32 %s, %s, 16" % (sL1a, sL1a))
    I("s_min_u32 %s, %s, (L_CODE_END - %s - 4) / 128" % (sL1a, sL1a, KN))
    I("s_lshl_b32 %s, %s, 7" % (sL1a, sL1a))
    I("s_load_dword %s, %s, %s" % (sL1m, sPC, sL1a))
def ckv_rows(z0, z1, throttle=True):
    for z in range(z0, z1):
        fly = K_FLY if z < 16 else K_FLYB
        if throttle and max(len(l) for l in k.vms) >= fly:
            I("s_waitcnt vmcnt(%d)" % (fly - 1))
            for l in k.vms:
                if len(l) > fly - 1: del l[:len(l) - (fly - 1)]
        if z == 16:
            I("s_xor_b32 %s, %s, 0x1c000" % (sCKo, sCKo))
        elif z and (z & 3) == 0:
            I("s_add_u32 %s, %s, 0x4000" % (sCKo, sCKo))
        zz = z & 15
        I("s_add_u32 m0, %s, %d" % (sCKm, (z >> 4) * 64 * 1056 + (zz >> 2) * 4 * 1056 + 32 * (zz & 3)))
        I("buffer_load_dwordx4 %s, %s, %s offen offset:%d nt lds" % (vL16, CK, sCKo, 1024 * (z & 3)), tag="ckA" if z < 16 else "ckB")
def gather(name, loads, check, after_first=None, issued=False):
    Lr = k.newlabel("L_retry_" + name); Ld = k.newlabel("L_done_" + name)
    if not issued: loads(name)
    if after_first: after_first()
    k.wait_vm(name)
    stamp(name + "_1st")
    flush(True)
    check()
    I("s_cbranch_scc0 %s" % Ld)
    I("s_mov_b32 %s, 0" % sSpin)
    k.label(Lr)
    I("s_add_u32 %s, %s, 1" % (sSpin, sSpin))
    I("s_cmp_gt_u32 %s, %d" % (sSpin, SPIN_MAX))
    I("s_cbranch_scc1 L_END")
    loads(name)
    k.wait_vm0()
    check()
    I("s_cbranch_scc1 %s" % Lr)
    k.label(Ld)
    stamp(name + "_ok")
def check64(regs):
    def f():
        for n, r in enumerate(regs):
            I("v_cmp_ne_u64 %s, %s, %s" % ("vcc" if n == 0 else sM, sTT, V(r, 2)))
            if n > 0: I("s_or_b64 vcc, vcc, %s" % sM)
        if len(regs) == 1: I("s_cmp_lg_u64 vcc, 0")
    return f
def check_frags(base, n, sT2=sT2):
    def f():
        acc = ACC + 24
        I("v_xor_b32 %s, %s, %s" % (V(acc), sT, V(base)))
        I("v_xor_b32 %s, %s, %s" % (V(acc + 1), sT2, V(base + 1)))
        for i in range(n):
            for (o, t, a) in ((0, sT, acc), (1, sT2, acc + 1), (6, sT, acc), (7, sT2, acc + 1)):
                if i == 0 and o < 2: continue
                I("v_bitop3_b32 %s, %s, %s, %s bitop3:0xf6" % (V(a), V(a), V(base + 8*i + o), t))
        I("v_cmp_ne_u64 vcc, 0, %s" % V(acc, 2))
        I("s_cmp_lg_u64 vcc, 0")
    return f
def publish(soff, tag="st"):
    I("v_cvt_pk_bf16_f32 %s, %s, %s" % (V(GR + 2), V(ACC), V(ACC + 1)))
    I("v_cvt_pk_bf16_f32 %s, %s, %s" % (V(GR + 3), V(ACC + 2), V(ACC + 3)))
    ex(mk2)
    I("buffer_store_dwordx4 %s, %s, %s, %s offen sc1" % (V(GR, 4), oPub, WS, soff), tag=tag)
    ex(-1)
def lstore(text, tag="st"):
    if not LOCAL:
        for t in text: I(t + " sc1", tag=tag)
        return
    La, Lb = k.newlabel("L_ls"), k.newlabel("L_ls")
    I("s_cmp_eq_u32 %s, 0" % sLoc)
    I("s_cbranch_scc1 %s" % La)
    for t in text: I(t, tag=tag)
    I("s_branch %s" % Lb)
    k.label(La)
    for t in text: I(t + " sc1", tag=tag)
    k.label(Lb)
def red4(D, out):
    t1 = ACC + 16
    for p in range(2):
        for r in range(4):
            I("v_add_f32_dpp %s, %s, %s row_ror:8 row_mask:0xf bank_mask:0x3" % (V(t1 + 4*p + r), V(D + 4*p + r), V(D + 4*p + r)))
        for r in range(4):
            I("v_add_f32_dpp %s, %s, %s row_ror:8 row_mask:0xf bank_mask:0xc" % (V(t1 + 4*p + r), V(D + 8 + 4*p + r), V(D + 8 + 4*p + r)))
    for r in range(4):
        I("v_add_f32_dpp %s, %s, %s row_shl:4 row_mask:0xf bank_mask:0x5" % (V(out + r), V(t1 + r), V(t1 + r)))
    for r in range(4):
        I("v_add_f32_dpp %s, %s, %s row_shr:4 row_mask:0xf bank_mask:0xa" % (V(out + r), V(t1 + 4 + r), V(t1 + 4 + r)))
    for r in range(4):
        I("v_add_f32_dpp %s, %s, %s quad_perm:[2,3,0,1]%s" % (V(out + r), V(out + r), V(out + r), DPP))
def red_j(shs):
    for sh in shs:
        for r in range(4):
            I("v_add_f32_dpp %s, %s, %s row_ror:%d%s" % (V(ACC + r), V(ACC + r), V(ACC + r), sh, DPP))
def role(lo, hi, name):
    I("s_cmp_ge_u32 %s, 4" % sW)
    br("s_cbranch_scc1 L_%s_hi" % name)
    lo()
    br("s_branch L_%s_end" % name)
    label("L_%s_hi" % name)
    hi()
    label("L_%s_end" % name)

hdr = open("cdna_kernels/%s.s.ref" % KN[:-7]).read().split("\n")
for ln in hdr:
    if ln.startswith("; @launch"): break
    k.raw(ln)
k.raw("; @launch grid=(256,1,1) block=(512,1,1) lds=%d" % LDS_SIZE)
k.raw('.amdgcn_target "amdgcn-amd-amdhsa--gfx950"\n.text\n.globl %s\n.p2align 12\n.p2align 8\n.type %s,@function\n%s:' % (KN, KN, KN))
sizes = {4: 2048, 8: 8 << 20, 12: 4 << 20, 16: 4 << 20, 20: 4 << 20, 24: 4 << 20, 28: 512*1376*2, 32: 512*1376*2, 36: 512*1376*2, 40: 2048, 44: WS_SIZE}
for srd, off in ((12, 16), (4, 0), (16, 24), (8, 8), (44, 96)):
    I("s_load_dwordx2 s[%d:%d], s[0:1], %d" % (srd, srd + 1, off))
stamp("entry")
if STAMP: I("v_mov_b32 %s, 0" % vST)
I("s_cmp_ge_u32 s2, 256")
I("s_cbranch_scc1 L_END")
I("v_lshrrev_b32 %s, 6, v0" % vA)
I("v_and_b32 %s, 63, v0" % vL)
I("v_readfirstlane_b32 %s, %s" % (sW, vA))
I("v_and_b32 %s, 15, v0" % vN)
I("v_bfe_u32 %s, v0, 4, 2" % vS)
I("s_and_b32 %s, s2, 7" % sX8)
I("s_bfe_u32 %s, s2, 0x30003" % sJ)
I("s_lshr_b32 %s, s2, 6" % sG)
I("s_lshl2_add_u32 %s, %s, %s" % (sH, sX8, sG))
for srd in (12, 4, 16, 44):
    I("s_mov_b32 s%d, 0x%x" % (srd + 2, sizes[srd])); I("s_mov_b32 s%d, 0x20000" % (srd + 3))
I("v_and_b32 %s, 1, %s" % (vA, vS))
I("v_lshlrev_b32 %s, 15, %s" % (vF16, vA))
I("v_lshrrev_b32 %s, 1, %s" % (vB, vS))
I("v_lshl_add_u32 %s, %s, 18, %s" % (vF16, vB, vF16))
I("v_lshl_add_u32 %s, %s, 4, %s" % (vF16, vN, vF16))
I("s_lshl_b32 %s, %s, 19" % (sD, sJ)); I("s_lshl_b32 %s, %s, 8" % (sC, sH)); I("s_add_u32 %s, %s, %s" % (sD, sD, sC))
I("s_lshr_b32 %s, %s, 1" % (sA, sW)); I("s_and_b32 %s, %s, 1" % (sB, sW))
I("s_lshl2_add_u32 %s, %s, %s" % (sWD, sA, sB))
I("s_lshl_b32 %s, %s, 14" % (sA, sWD)); I("s_add_u32 %s, %s, %s" % (sUV, sD, sA)); I("s_add_u32 %s, %s, 8192" % (sC, sUV))
I("s_mul_i32 %s, %s, 2112" % (sW2112, sW))
I("s_add_u32 m0, %s, %d" % (sW2112, WQI))
I("v_lshlrev_b32 %s, 4, %s" % (vL16, vL))
I("v_lshlrev_b32 %s, 4, %s" % (vS16, vS))
I("v_and_b32 %s, 1, %s" % (r1, vN))
I("v_lshl_add_u32 %s, %s, 10, %s" % (vC, r1, vS16))
I("v_lshrrev_b32 %s, 1, %s" % (vB, vN))
I("v_lshl_add_u32 %s, %s, 7, %s" % (vC, vB, vC))
I("s_lshl3_add_u32 %s, %s, %s" % (sGrp, sH, sJ))
I("s_lshl3_add_u32 %s, %s, %s" % (sA, sGrp, sW)); I("s_lshl_b32 %s, %s, 7" % (sA, sA))
I("s_add_u32 %s, %s, 0x%x" % (sHFp, sA, WS_H0L))
I("s_lshl_b32 %s, %s, 10" % (sSpin, sB)); I("s_add_u32 %s, %s, %d" % (sSpin, sSpin, XI)); I("s_lshl_b32 %s, %s, 6" % (sB, sB))
for r in range(4): I("v_mov_b32 %s, 0x%x" % (V(ACC + r), SENT))
I("s_lshl_b32 %s, %s, 3" % (sL1a, sA)); I("s_add_u32 %s, %s, 0x%x" % (sL1a, sL1a, WS_H2))
lgkm(0)
stamp("karg")
I("s_load_dword %s, s[44:45], 0" % sT)
I("buffer_load_dwordx4 %s, %s, %s offen nt lds" % (vF16, WQ, sUV), tag="wq")
I("s_add_u32 m0, m0, 1056")
I("s_cmp_lt_u32 %s, 2" % sW)
I("buffer_load_dwordx4 %s, %s, %s offen nt lds" % (vF16, WQ, sC), tag="wq")
I("s_cbranch_scc0 L_nox")
I("s_mov_b32 m0, %s" % sSpin)
I("buffer_load_dwordx4 %s, %s, %s offen lds" % (vC, X, sB), tag="wq")
k.label("L_nox")
if CLR == 0:
    I("buffer_store_dwordx4 %s, %s, %s, %s offen sc1" % (V(ACC, 4), vL16, WS, sL1a), tag="wq")
elif CLR == 1:
    I("s_bitcmp1_b32 s2, 3")
    I("s_cbranch_scc1 L_noclr")
    I("buffer_store_dwordx4 %s, %s, %s, %s offen sc1" % (V(ACC, 4), vL16, WS, sL1a), tag="wq")
    I("s_add_u32 %s, %s, 8192" % (sL1a, sL1a))
    I("buffer_store_dwordx4 %s, %s, %s, %s offen sc1" % (V(ACC, 4), vL16, WS, sL1a), tag="wq")
    k.label("L_noclr")
I("s_barrier")
stamp("O1")
I("s_add_u32 %s, %s, 0x%x" % (sH25p, sA, WS_H25))
I("v_mul_u32_u24 %s, 0x%x, %s" % (vA, WS_H0L - WS_H25, vL))
ex(3)
I("buffer_load_dword v38, %s, %s, %s offen sc1" % (vA, WS, sH25p), tag="pt")
ex(-1)
I("s_add_u32 %s, %s, 0x%x" % (sC, sA, WS_H0))
I("s_lshl3_add_u32 %s, s2, %s" % (sB, sW)); I("s_lshl_b32 %s, %s, 9" % (sB, sB)); I("s_add_u32 %s, %s, 0x%x" % (sB, sB, WS_H3))
I("s_cmp_lt_u32 s2, 32"); I("s_cselect_b32 %s, %s, 0x7f000000" % (sB, sB))
I("v_lshlrev_b32 %s, 7, %s" % (vA, vL))
ex(15)
I("buffer_load_dword v39, %s, %s, %s offen sc1" % (vA, WS, sB), tag="pt")
ex(-1)
I("s_mov_b32 s10, 0x%x" % sizes[8]); I("s_mov_b32 s11, 0x20000")
I("s_lshr_b32 %s, s2, 3" % sI)
I("s_lshr_b32 %s, %s, 2" % (sA, sI)); I("s_lshl3_add_u32 %s, %s, %s" % (sTile, sX8, sA))
I("s_and_b32 %s, %s, 3" % (sW4, sW))
I("s_mul_i32 %s, %s, %d" % (sCKm, sW4, 16*1056)); I("s_add_u32 %s, %s, %d" % (sCKm, sCKm, CKV))
I("s_and_b32 %s, %s, 2" % (sA, sI)); I("s_lshl3_add_u32 %s, %s, %s" % (sA, sA, sW4))
I("s_lshl_b32 %s, %s, 12" % (sA, sA)); I("s_lshl_b32 %s, %s, 17" % (sCKo, sTile)); I("s_add_u32 %s, %s, %s" % (sCKo, sCKo, sA))
I("s_bitcmp1_b32 s2, 3")
br("s_cbranch_scc0 L_fetch0")
def clr2():
    I("buffer_store_dwordx4 %s, %s, %s, %s offen sc1" % (V(ACC, 4), vL16, WS, sL1a), tag="wuk")
    I("s_sub_u32 %s, %s, 8192" % (sL1a, sL1a))
    I("buffer_store_dwordx4 %s, %s, %s, %s offen sc1" % (V(ACC, 4), vL16, WS, sL1a), tag="wuk")
if CLR == 2: clr2()
I("s_add_u32 m0, %s, %d" % (sW2112, WUKI))
I("s_sub_u32 %s, %s, 0x80000" % (sA, sUV))
I("buffer_load_dwordx4 %s, %s, %s offen nt lds" % (vF16, WUK, sA), tag="wuk")
I("s_add_u32 m0, m0, 1056"); I("s_add_u32 %s, %s, 8192" % (sA, sA))
I("buffer_load_dwordx4 %s, %s, %s offen nt lds" % (vF16, WUK, sA), tag="wuk")
I("s_add_u32 m0, m0, %d" % (16896 - 1056))
I("buffer_load_dwordx4 %s, %s, %s offen nt lds" % (vF16, WUK, sUV), tag="wuk")
I("s_add_u32 m0, m0, 1056"); I("s_add_u32 %s, %s, 8192" % (sA, sUV))
I("buffer_load_dwordx4 %s, %s, %s offen nt lds" % (vF16, WUK, sA), tag="wuk")
if CLR == 3: clr2()
br("s_branch L_r0")
label("L_fetch0")
I("s_cmp_lt_u32 %s, 4" % sW)
br("s_cbranch_scc1 L_flo")
ckv_rows(0, R0, throttle=False)
br("s_branch L_r0")
label("L_flo")
if CLR == 4:
    I("s_mul_i32 %s, %s, 3072" % (sA, sW)); I("s_add_u32 %s, %s, %s" % (sL1a, sL1a, sA))
    for r in range(4):
        I("buffer_store_dwordx4 %s, %s, %s, %s offen offset:%d sc1" % (V(ACC, 4), vL16, WS, sL1a, 1024*r), tag="clr")
label("L_r0")
for srd, off in ((20, 32), (24, 40), (28, 56), (32, 64), (36, 72), (40, 80)):
    I("s_load_dwordx2 s[%d:%d], s[0:1], %d" % (srd, srd + 1, off))
for srd in (20, 24, 28, 32, 36, 40):
    I("s_mov_b32 s%d, 0x%x" % (srd + 2, sizes[srd])); I("s_mov_b32 s%d, 0x20000" % (srd + 3))
I("s_and_b32 %s, %s, 3" % (sHG, sI))
I("s_lshl3_add_u32 %s, %s, %s" % (sFS, sG, sX8))
setmask(mk8, 0x00ff00ff); setmask(mk2, 0x00030003)
I("s_lshl_b32 %s, %s, 1" % (sA, sJ)); I("s_lshl_b64 %s, %s, %s" % (mkJ, mk2, sA))
I("s_getreg_b32 %s, hwreg(HW_REG_XCC_ID)" % sT2x)
I("s_mov_b32 %s, 0x3f803f80" % sOnes)
ONE = QB + 44
for r in range(4): I("v_mov_b32 %s, %s" % (V(ONE + r), sOnes))
I("v_cmp_lt_u32 %s, 7, %s" % (sHi, vN))
t8, t9, t10, t11, t12, t13, t14 = [V(QB + 32 + i) for i in range(7)]
I("v_lshrrev_b32 %s, 2, %s" % (vA, vL)); I("v_and_b32 %s, 3, %s" % (vB, vL)); I("v_and_b32 %s, 1, %s" % (vC, vA))
I("v_mul_u32_u24 %s, 1056, %s" % (vTr, vA)); I("v_lshl_add_u32 %s, %s, 3, %s" % (vTr, vB, vTr))
I("s_lshl_b32 %s, %s, 5" % (sA, sW)); I("v_add_u32 %s, %s, %s" % (aTrA, sA, vTr))
I("v_add_u32 %s, %d, %s" % (r0, WQI, aTrA))
I("v_lshl_add_u32 %s, %s, 6, %s" % (oPub, r1, vS16))
I("v_lshrrev_b32 %s, 3, %s" % (t8, vL)); I("v_bfe_u32 %s, %s, 3, 1" % (t9, vL)); I("v_lshrrev_b32 %s, 5, %s" % (t11, vL))
I("v_and_b32 %s, 7, %s" % (vL7, vL)); I("v_lshlrev_b32 %s, 4, %s" % (t13, vL7))
I("v_mul_u32_u24 %s, 1056, %s" % (t10, vN)); I("v_add_u32 %s, %s, %s" % (t10, t10, vS16))
I("v_and_b32 %s, 1, %s" % (t12, vS))
I("v_mul_u32_u24 %s, 288, %s" % (aCPw, vC)); I("v_lshl_add_u32 %s, %s, 3, %s" % (aCPw, vB, aCPw)); I("v_lshl_add_u32 %s, %s, 5, %s" % (aCPw, t8, aCPw))
I("s_mul_i32 %s, %s, 576" % (sA, sW)); I("v_add_u32 %s, %s, %s" % (aCPw, sA, aCPw))
I("v_mul_u32_u24 %s, 288, %s" % (aCPr, vN)); I("v_add_u32 %s, %s, %s" % (aCPr, aCPr, vS16))
I("s_and_b32 %s, %s, 1" % (sA, sW)); I("s_lshl_b32 %s, %s, 9" % (sA, sA)); I("s_lshr_b32 %s, %s, 1" % (sB, sW4)); I("s_mul_i32 %s, %s, 16896" % (sB, sB))
I("s_add_u32 %s, %s, %s" % (sA, sA, sB)); I("v_add_u32 %s, %s, %s" % (r2, sA, t10))
I("v_lshl_add_u32 %s, %s, 1, %s" % (r3, vS, t9)); I("v_lshlrev_b32 %s, 4, %s" % (r3, r3)); I("v_lshl_add_u32 %s, %s, 16, %s" % (r3, r1, r3))
I("s_lshl3_add_u32 %s, %s, %s" % (sA, sH, sW)); I("s_lshl_b32 %s, %s, 10" % (sH25g, sA))
I("v_mov_b32 %s, 0" % V(ACC + 8)); I("v_mov_b32 %s, 0" % V(ACC + 10)); I("v_mov_b32 %s, %d" % (V(ACC + 11), 1 if LOCAL else 0))
ex(1)
I("ds_write_b64 %s, %s offset:%d" % (V(ACC + 8), V(ACC + 10, 2), CNT))
ex(-1)
PT = 2
def wait_role(n_after):
    La, Lb = k.newlabel("L_wr"), k.newlabel("L_wr")
    I("s_bitcmp1_b32 s2, 3")
    I("s_cbranch_scc0 %s" % Lb)
    I("s_waitcnt vmcnt(%d)" % (n_after + (6 if CLR in (2, 3) else 4)))
    I("s_branch %s" % La)
    k.label(Lb)
    Lc = k.newlabel("L_wr")
    I("s_cmp_ge_u32 %s, 4" % sW)
    I("s_cbranch_scc1 %s" % Lc)
    I("s_waitcnt vmcnt(%d)" % (n_after + (4 if CLR == 4 else 0)))
    I("s_branch %s" % La)
    k.label(Lc)
    I("s_waitcnt vmcnt(%d)" % (n_after + R0))
    k.label(La)
stamp("preE")
lgkm(0)
stamp("E")
I("s_add_u32 %s, %s, 1" % (sT, sT)); I("s_not_b32 %s, %s" % (sT2, sT))
I("v_mov_b32 %s, %s" % (V(GR), sT)); I("v_mov_b32 %s, %s" % (V(GR + 1), sT2))
I("s_and_b32 %s, %s, 15" % (sT2x, sT2x)); I("s_add_u32 %s, %s, 1" % (sT2x, sT2x)); I("s_xor_b32 %s, %s, %s" % (sT2x, sT2x, sT2)); I("s_mov_b32 %s, %s" % (sTXa, sT))
I("v_mov_b32 %s, %s" % (V(ACC + 12), sT)); I("v_mov_b32 %s, %s" % (V(ACC + 13), sT2x))
wait_role(PT)
stamp("wq")
I("s_barrier")
stamp("B1")
WQF = QB
I("ds_read_b128 %s, %s offset:%d" % (V(XF, 4), vL16, XI))
I("ds_read_b128 %s, %s offset:%d" % (V(XF + 4, 4), vL16, XI + 1024))
for z in range(4):
    I("ds_read_b64_tr_b16 %s, %s offset:%d" % (V(WQF + 2*z, 2), r0, 256*z))
k.lgkm(4)
mfma(ACC + 8, ONE, XF, "0")
mfma(ACC + 8, ONE, XF + 4, ACC + 8)
k.lgkm(2)
mfma(ACC, WQF, XF, "0")
mfma(ACC + 4, WQF, ONE, "0")
lgkm(0)
mfma(ACC, WQF + 4, XF + 4, ACC)
mfma(ACC + 4, WQF + 4, ONE, ACC + 4)
I("s_barrier")
for sh in (8, 4, 2):
    I("v_add_f32_dpp %s, %s, %s row_ror:%d%s" % (V(ACC + 8), V(ACC + 8), V(ACC + 8), sh, DPP))
I("v_mul_f32 %s, 0xbb000000, %s" % (vNM, V(ACC + 8)))
for r in range(4): I("v_fmac_f32 %s, %s, %s" % (V(ACC + r), V(ACC + 4 + r), vNM))
if CLR == 4:
    I("s_lshr_b32 %s, %s, 2" % (sA, sW)); I("s_or_b32 %s, %s, %s" % (sA, sA, sI)); I("s_bitcmp1_b32 %s, 0" % sA)
    I("s_cbranch_scc1 L_clrok")
    I("s_waitcnt vmcnt(0)")
    k.label("L_clrok")
ex(mkJ)
if LOCAL:
    I("v_cvt_pk_bf16_f32 %s, %s, %s" % (V(ACC + 14), V(ACC), V(ACC + 1)))
    I("v_cvt_pk_bf16_f32 %s, %s, %s" % (V(ACC + 15), V(ACC + 2), V(ACC + 3)))
    I("buffer_store_dwordx4 %s, %s, %s, %s offen" % (V(ACC + 12, 4), oPub, WS, sHFp), tag="st")
I("v_cvt_pk_bf16_f32 %s, %s, %s" % (V(GR + 2), V(ACC), V(ACC + 1)))
I("v_cvt_pk_bf16_f32 %s, %s, %s" % (V(GR + 3), V(ACC + 2), V(ACC + 3)))
I("buffer_store_dwordx4 %s, %s, %s, %s offen sc1" % (V(GR, 4), oPub, WS, sC), tag="st")
ex(-1)
stamp("A0pub")
R1 = R0 + knob("R1X", 10)
I("s_bitcmp1_b32 s2, 3")
br("s_cbranch_scc1 L_nof1")
I("s_cmp_lt_u32 %s, 4" % sW)
br("s_cbranch_scc1 L_nof1")
ckv_rows(R0, R1, throttle=False)
label("L_nof1")
a = ACC + 16; b = ACC + 17
I("v_dot2_f32_bf16 %s, %s, %s, 0" % (V(a), V(XF), V(XF)))
for r in range(1, 8): I("v_dot2_f32_bf16 %s, %s, %s, %s" % (V(a), V(XF + r), V(XF + r), V(a)))
I("s_add_u32 %s, %s, 0x%x" % (sB, sH25g, WS_H0L)); I("s_add_u32 %s, %s, 0x%x" % (sC, sH25g, WS_H0)); I("s_add_u32 %s, %s, 0x%x" % (sH25g, sH25g, WS_H25))
for sh in (8, 4, 2):
    I("v_add_f32_dpp %s, %s, %s row_ror:%d%s" % (V(a), V(a), V(a), sh, DPP))
for sw in ("16", "32"):
    I("v_mov_b32 %s, %s" % (V(b), V(a)))
    I("v_permlane%s_swap_b32 %s, %s" % (sw, V(a), V(b)))
    I("v_add_f32 %s, %s, %s" % (V(a), V(a), V(b)))
I("v_mul_f32 %s, 0x3b000000, %s" % (V(a), V(a)))
I("v_fma_f32 %s, -%s, %s, %s" % (V(a), vNM, vNM, V(a)))
I("v_max_f32 %s, 0, %s" % (V(a), V(a)))
I("v_add_f32 %s, 0x3727c5ac, %s" % (V(a), V(a)))
I("v_rsq_f32 %s, %s" % (vRS, V(a)))
SCALE = struct.unpack("<I", struct.pack("<f", math.log2(math.e) / math.sqrt(128.0)))[0]
I("s_lshr_b32 %s, %s, 1" % (sA, sW4))
I("v_mul_f32 %s, 0x%08x, %s" % (vSC, SCALE, vRS))
I("v_readlane_b32 %s, %s, %s" % (sRS, vRS, sA))
I("s_bitcmp1_b32 s2, 3")
br("s_cbranch_scc0 L_pc2")
WUF = FR
def ld_h0(soff): I("buffer_load_dwordx4 %s, %s, %s, %s offen sc1" % (V(ACC + 4, 4), vL16, WS, soff), tag="h0")
def chk(tt):
    I("v_cmp_ne_u64 vcc, %s, %s" % (tt, V(ACC + 4, 2)))
    I("s_cmp_lg_u64 vcc, 0")
if LOCAL: I("s_waitcnt vmcnt(%d)" % knob("LWN", 2))
else: I("s_waitcnt vmcnt(0)")
stamp("W")
ld_h0(sB if LOCAL else sC)
I("s_waitcnt vmcnt(3)")
I("s_barrier")
I("s_cmp_ge_u32 %s, 4" % sW)
I("s_cbranch_scc1 L_nowu")
for ks in range(8):
    I("ds_read_b128 %s, %s offset:%d" % (V(WUF + 4*ks, 4), r2, WUKI + 64*ks))
k.label("L_nowu")
k.wait_vm0()
stamp("h0_1st"); flush(True)
chk(sTX if LOCAL else sTT)
I("s_cbranch_scc0 L_h0_done")
I("s_mov_b32 %s, 0" % sSpin)
k.label("L_h0_retry")
I("s_add_u32 %s, %s, 1" % (sSpin, sSpin))
I("s_cmp_gt_u32 %s, %d" % (sSpin, SPIN_MAX))
I("s_cbranch_scc1 L_END")
if LOCAL:
    ld_h0(sB)
    k.wait_vm0()
    chk(sTX)
    I("s_cbranch_scc0 L_h0_done")
    I("s_cmp_lt_u32 %s, %d" % (sSpin, NL))
    I("s_cbranch_scc1 L_h0_retry")
ld_h0(sC)
k.wait_vm0()
chk(sTT)
I("s_cbranch_scc1 L_h0_retry")
k.label("L_h0_done")
stamp("h0_ok")
I("ds_write_b64 %s, %s offset:%d" % (aCPw, V(ACC + 6, 2), QP))
lgkm(0)
I("s_barrier")
stamp("B2")
I("s_cmp_ge_u32 %s, 4" % sW)
br("s_cbranch_scc1 L_a1_hi")
QPF = FR + 32
for ks in range(4):
    I("ds_read_b128 %s, %s offset:%d" % (V(QPF + 4*ks, 4), aCPr, QP + 64*ks))
I("s_lshl1_add_u32 %s, %s, %s" % (sA, sGrp, sW)); I("s_lshl_b32 %s, %s, 7" % (sA, sA)); I("s_add_u32 %s, %s, 0x%x" % (sA, sA, WS_H1 - 256))
for ks in range(4):
    k.lgkm(3 - ks)
    mfma(ACC + 4, WUF + 4*ks, QPF + 4*ks, "0" if ks == 0 else ACC + 4)
    mfma(ACC + 8, WUF + 16 + 4*ks, QPF + 4*ks, "0" if ks == 0 else ACC + 8)
for r in range(4): I("v_add_f32_dpp %s, %s, %s row_ror:8 row_mask:0xf bank_mask:0x3" % (V(ACC + r), V(ACC + 4 + r), V(ACC + 4 + r)))
for r in range(4): I("v_add_f32_dpp %s, %s, %s row_ror:8 row_mask:0xf bank_mask:0xc" % (V(ACC + r), V(ACC + 8 + r), V(ACC + 8 + r)))
for r in range(4): I("v_add_f32_dpp %s, %s, %s row_shl:4 row_mask:0xf bank_mask:0x5" % (V(ACC + r), V(ACC + r), V(ACC + r)))
for r in range(4): I("v_add_f32_dpp %s, %s, %s quad_perm:[2,3,0,1]%s" % (V(ACC + r), V(ACC + r), V(ACC + r), DPP))
for r in range(4): I("v_mul_f32 %s, %s, %s" % (V(ACC + r), vSC, V(ACC + r)))
I("v_cvt_pk_bf16_f32 %s, %s, %s" % (V(GR + 2), V(ACC), V(ACC + 1)))
I("v_cvt_pk_bf16_f32 %s, %s, %s" % (V(GR + 3), V(ACC + 2), V(ACC + 3)))
ex32(0x03030303)
I("buffer_store_dwordx4 %s, %s, %s, %s offen sc1" % (V(GR, 4), r3, WS, sA), tag="st")
ex(-1)
stamp("A1pub")
br("s_branch L_pc2")
label("L_a1_hi")
ckv_rows(0, R1, throttle=False)
hi_vms = [["ckA"] * R1]
label("L_pc2")
def common_pc():
    I("v_lshlrev_b32 %s, 5, %s" % (oWO, vS)); I("v_lshl_add_u32 %s, %s, 2, %s" % (oWO, t9, oWO)); I("v_lshl_add_u32 %s, %s, 10, %s" % (oWO, oWO, t13))
    I("s_lshl_b32 %s, %s, 11" % (sC, sWD)); I("s_lshl_b32 %s, %s, 7" % (sB, sJ)); I("s_add_u32 %s, %s, %s" % (sC, sC, sB))
    I("s_lshl_b32 %s, %s, 17" % (sA, sH)); I("s_add_u32 %s, %s, %s" % (sA, sA, sC)); I("v_add_u32 %s, %s, %s" % (oWO, sA, oWO))
    I("v_lshlrev_b32 %s, 5, %s" % (t14, t12)); I("v_lshl_add_u32 %s, %s, 2, %s" % (t14, t9, t14)); I("v_add_u32 %s, %s, %s" % (t14, t14, t11))
    I("v_lshl_add_u32 %s, %s, 10, %s" % (oWD, t14, t13))
    I("s_lshl_b32 %s, %s, 16" % (sA, sFS)); I("s_add_u32 %s, %s, %s" % (sA, sA, sC)); I("v_add_u32 %s, %s, %s" % (oWD, sA, oWD))
    I("s_lshl3_add_u32 %s, %s, %s" % (sA, sHG, sW4)); I("s_lshl_b32 %s, %s, 11" % (sA, sA))
    I("s_lshr_b32 %s, %s, 5" % (sB, sTile)); I("s_lshl_b32 %s, %s, 16" % (sB, sB)); I("s_add_u32 %s, %s, %s" % (sA, sA, sB)); I("s_add_u32 %s, %s, 0x%x" % (sA, sA, WS_H1))
    I("v_add_u32 %s, %s, %s" % (oH1, sA, vL16))
    I("s_mul_i32 %s, %s, 544" % (sA, sW4)); I("v_lshl_add_u32 %s, %s, 3, %s" % (aQw, vL, sA))
    I("s_lshl3_add_u32 %s, %s, %s" % (sA, sGrp, sW)); I("s_lshl_b32 %s, %s, 10" % (sA, sA)); I("s_add_u32 %s, %s, 0x%x" % (sA, sA, WS_H2))
    I("v_add_u32 %s, %s, %s" % (oH2, sA, vL16))
    I("v_lshlrev_b32 %s, 6, %s" % (aOWw, t12)); I("v_lshl_add_u32 %s, %s, 3, %s" % (aOWw, vL7, aOWw)); I("v_lshl_add_u32 %s, %s, 2, %s" % (aOWw, t11, aOWw))
    I("s_lshr_b32 %s, %s, 2" % (sA, sW)); I("s_lshl1_add_u32 %s, %s, %s" % (sA, sW4, sA)); I("s_mul_i32 %s, %s, 160" % (sA, sA))
    I("v_add_u32 %s, %s, %s" % (aOWw, sA, aOWw))
    I("v_mul_u32_u24 %s, 160, %s" % (aST2r, vL7)); I("v_add_u32 %s, %s, %s" % (aOWr, aST2r, vS16))
    I("s_mul_i32 %s, %s, %d" % (sL1m, sW4, 2112))
common_pc()
I("s_cmp_ge_u32 %s, 4" % sW)
br("s_cbranch_scc1 L_pc_hi")
I("s_mul_i32 %s, %s, %d" % (sL1m, sW4, 2112))
I("s_lshl_b32 %s, %s, 7" % (sB, sW))
I("s_lshl3_add_u32 %s, %s, %s" % (sA, sFS, sJ)); I("s_lshl_b32 %s, %s, 10" % (sA, sA)); I("s_add_u32 %s, %s, %s" % (sA, sA, sB)); I("s_add_u32 %s, %s, 0x%x" % (sHFp, sA, WS_HF))
I("s_lshl2_add_u32 %s, %s, %s" % (sA, sJ, sW)); I("s_lshl_b32 %s, %s, 12" % (sA, sA)); I("s_lshl_b32 %s, %s, 7" % (sB, sH))
I("s_add_u32 %s, %s, %s" % (sA, sA, sB)); I("s_add_u32 %s, %s, 0x%x" % (sH3p, sA, WS_H3))
I("v_mul_u32_u24 %s, 2752, %s" % (oGU, t14)); I("v_add_u32 %s, %s, %s" % (oGU, oGU, t13))
I("s_lshl3_add_u32 %s, %s, %s" % (sA, sJ, sW4)); I("s_mul_i32 %s, %s, %d" % (sL1a, sA, 8*2752)); I("s_lshl_b32 %s, %s, 7" % (sB, sFS)); I("s_add_u32 %s, %s, %s" % (sL1a, sL1a, sB))
I("s_cmp_lt_u32 %s, 22" % sFS); I("s_cselect_b32 %s, %s, 0x7f000000" % (sL1a, sL1a))
I("s_mul_i32 %s, %s, %d" % (sA, sW, 16*1056)); I("s_add_u32 %s, %s, %d" % (sA, sA, CKV))
I("v_add_u32 %s, %s, %s" % (aQKa, sA, t10)); I("v_add_u32 %s, %d, %s" % (aQKb, 64*1056, aQKa))
I("v_mul_u32_u24 %s, 544, %s" % (aQr, vN)); I("v_add_u32 %s, %s, %s" % (aQr, aQr, vS16))
I("v_mov_b32 %s, %s" % (aMXr, t13))
I("s_lshl_b32 %s, %s, 2" % (sA, sW)); I("v_add_u32 %s, %s, %s" % (aMXw, sA, aMXr))
I("v_mul_u32_u24 %s, 288, %s" % (aPw, vL7)); I("v_add_u32 %s, %s, %s" % (aPw, aPw, vS16)); I("v_lshl_add_u32 %s, %s, 3, %s" % (aPw, t9, aPw))
I("s_lshl_b32 %s, %s, 6" % (sA, sW)); I("v_add_u32 %s, %s, %s" % (aPw, sA, aPw))
I("v_mul_u32_u24 %s, 1056, %s" % (aTrF, t8)); I("v_lshl_add_u32 %s, %s, 9, %s" % (aTrF, vC, aTrF)); I("v_lshl_add_u32 %s, %s, 3, %s" % (aTrF, vB, aTrF))
I("s_lshl_b32 %s, %s, 5" % (sA, sW4)); I("s_add_u32 %s, %s, %d" % (sA, sA, GI)); I("v_add_u32 %s, %s, %s" % (aTrF, sA, aTrF))
I("v_lshl_add_u32 %s, %s, 2, %s" % (oOut, vB, vS)); I("v_lshl_add_u32 %s, %s, 9, %s" % (oOut, vC, oOut))
I("s_lshl_b32 %s, s2, 4" % sA); I("v_add_lshl_u32 %s, %s, %s, 1" % (oOut, oOut, sA))
I("v_mul_u32_u24 %s, 160, %s" % (aHBr, vN)); I("v_add_u32 %s, %s, %s" % (aHBr, aHBr, vS16))
if PF:
    flush(True)
    I("s_mov_b64 exec, 0")
    for w in range(3):
        I("s_cmp_eq_u32 %s, %d" % (sW, w)); I("s_cbranch_scc1 L_stub_%d" % w)
    I("s_branch L_stub_3")
    k.label("L_back")
    ex(-1)
if LOCAL:
    I("s_cmp_lg_u32 %s, 0" % sW)
    br("s_cbranch_scc1 L_pc_end")
    I("v_lshlrev_b32 %s, 10, %s" % (V(ACC + 20), vL))
    I("s_add_u32 %s, %s, 0x%x" % (sB, sH25g, WS_H0L - WS_H25))
    I("s_mov_b32 %s, 0" % sSpin)
    I("s_mov_b64 exec, 0xff")
    k.label("L_loc")
    I("buffer_load_dwordx2 %s, %s, %s, %s offen sc1" % (V(ACC + 22, 2), V(ACC + 20), WS, sB), tag="loc")
    I("s_add_u32 %s, %s, 1" % (sSpin, sSpin))
    k.wait_vm0()
    I("v_cmp_ne_u64 vcc, %s, %s" % (sTX, V(ACC + 22, 2)))
    I("s_cbranch_vccz L_locok")
    I("s_cmp_lt_u32 %s, 3" % sSpin)
    I("s_cbranch_scc1 L_loc")
    I("v_mov_b32 %s, 0" % V(ACC + 20))
    I("ds_write_b32 %s, %s offset:%d" % (V(ACC + 20), V(ACC + 20), LOC))
    k.label("L_locok")
    ex(-1)
br("s_branch L_pc_end")
label("L_pc_hi")
k.vms = [list(l) for l in hi_vms]
I("s_lshl_b32 %s, %s, 8" % (sA, sW4)); I("s_add_u32 %s, %s, %d" % (sA, sA, CKV))
I("v_add_u32 %s, %s, %s" % (aPVa, sA, vTr)); I("v_add_u32 %s, %d, %s" % (aPVb, 64*1056, aPVa))
I("v_mul_u32_u24 %s, 288, %s" % (aPr, vL7)); I("v_add_u32 %s, %s, %s" % (aPr, aPr, vS16))
I("v_mov_b32 %s, %s" % (aMXr_h, t13))
I("v_lshl_add_u32 %s, %s, 6, %s" % (oH2p, t9, vS16)); I("v_lshl_add_u32 %s, %s, 16, %s" % (oH2p, vL7, oH2p))
I("s_lshl_b32 %s, %s, 19" % (sA, sHG)); I("s_lshl_b32 %s, %s, 14" % (sB, sW4)); I("s_add_u32 %s, %s, %s" % (sA, sA, sB))
I("s_lshl_b32 %s, %s, 7" % (sB, sTile)); I("s_add_u32 %s, %s, %s" % (sA, sA, sB)); I("s_add_u32 %s, %s, 0x%x" % (sA, sA, WS_H2))
I("v_add_u32 %s, %s, %s" % (oH2p, sA, oH2p))
I("s_lshl_b32 %s, %s, 16" % (sA, sW4)); I("s_add_u32 %s, %s, %s" % (sUV, sD, sA))
I("v_lshlrev_b32 %s, 10, %s" % (oHF, vL7)); I("v_bfe_u32 %s, %s, 3, 2" % (t12, vL)); I("v_lshl_add_u32 %s, %s, 4, %s" % (oHF, t12, oHF))
I("v_lshl_add_u32 %s, %s, 7, %s" % (oHF, t11, oHF))
I("s_lshl_b32 %s, %s, 13" % (sC, sFS)); I("s_lshr_b32 %s, %s, 1" % (sA, sW4)); I("s_lshl_b32 %s, %s, 6" % (sB, sA)); I("s_add_u32 %s, %s, %s" % (sC, sC, sB))
I("s_and_b32 %s, %s, 1" % (sB, sW)); I("s_lshl_b32 %s, %s, 8" % (sSpin, sB)); I("s_add_u32 %s, %s, %s" % (sC, sC, sSpin)); I("s_add_u32 %s, %s, 0x%x" % (sC, sC, WS_HF))
I("v_add_u32 %s, %s, %s" % (oHF, sC, oHF))
I("s_mul_i32 %s, %s, 160" % (sC, sA)); I("s_lshl_b32 %s, %s, 6" % (sB, sB)); I("s_add_u32 %s, %s, %s" % (sC, sC, sB))
I("v_lshl_add_u32 %s, %s, 3, %s" % (aHBw, t8, sC))
I("v_mov_b32 %s, %s" % (vSC, sRS))
I("v_mov_b32 %s, 0" % r7); I("v_mov_b32 %s, 0" % r8)
I("v_mov_b32 %s, 0" % oGU)
for r in range(4): I("v_mov_b32 %s, %s" % (V(XF + r), sOnes))
ZH = knob("ZH", 24)
ckv_rows(R1, ZH)
stamp("pre1")
I("s_movk_i32 %s, 0x2000" % sC)
def ld_h1(tag):
    for u in range(4):
        I("buffer_load_dwordx4 %s, %s, %s, %s offen offset:%d sc1" % (V(ACC + 4*u, 4), oH1, WS, sC if u >= 2 else "0", 1024*(u & 1)), tag=tag)
I("s_bitcmp1_b32 s2, 3")
br("s_cbranch_scc0 L_noh1")
ld_h1("h1")
label("L_noh1")
ckv_rows(ZH, 32)
stamp("ckiss")
k.wait_vm("ckA")
hi_vms = [list(l) for l in k.vms]
label("L_pc_end")
I("s_lshl_b32 %s, %s, 12" % (sA, sW)); I("s_lshl4_add_u32 %s, %s, %s" % (sA, sH, sA)); I("s_add_u32 %s, %s, 0x%x" % (sA, sA, WS_HS))
I("v_lshl_add_u32 %s, %s, 9, %s" % (oHS, t8, sA))
I("v_mov_b32 %s, 0" % vA)
lgkm(0)
I("s_barrier")
stamp("Ha")
I("ds_read_b32 %s, %s offset:%d" % (vB, vA, LOC))
def qk_reads(half):
    for kk in range(16):
        I("ds_read_b128 %s, %s offset:%d" % (V(FR + 64*half + 4*kk, 4), aQKb if half else aQKa, 64*kk))
def pv_reads(q):
    for t in range(8):
        for kp in range(4):
            I("ds_read_b64_tr_b16 %s, %s offset:%d" % (V(FR + 16*t + 4*kp + 2*q, 2), aPVb if q else aPVa, 16*kp*1056 + 32*t))
def gu_loads():
    I("s_add_u32 m0, %s, %d" % (sL1m, GI))
    I("s_add_u32 %s, %s, %d" % (sA, sL1a, 2*2752))
    I("buffer_load_dwordx4 %s, %s, %s offen nt lds" % (oGU, GA, sL1a), tag="l1")
    I("s_add_u32 m0, m0, 1056")
    I("buffer_load_dwordx4 %s, %s, %s offen nt lds" % (oGU, GA, sA), tag="l1")
    I("s_add_u32 m0, %s, %d" % (sL1m, UI))
    I("buffer_load_dwordx4 %s, %s, %s offen nt lds" % (oGU, UP, sL1a), tag="l1")
    I("s_add_u32 m0, m0, 1056")
    I("buffer_load_dwordx4 %s, %s, %s offen nt lds" % (oGU, UP, sA), tag="l1")
def uv_loads():
    I("s_lshl1_add_u32 m0, %s, %d" % (sL1m, WUVI))
    for r in range(4):
        I("buffer_load_dwordx4 %s, %s, %s offen nt lds" % (vF16, WUV, sUV), tag="l1")
        if r < 3: I("s_add_u32 m0, m0, 1056"); I("s_add_u32 %s, %s, 8192" % (sUV, sUV))
def l2_loads():
    I("s_add_u32 m0, %s, %d" % (sW2112, WOI))
    I("buffer_load_dwordx4 %s, %s, 0 offen nt lds" % (oWO, WO), tag="l2")
    I("s_add_u32 m0, m0, 32")
    I("s_lshr_b32 %s, %s, 1" % (sB, sW2112))
    I("buffer_load_dwordx4 %s, %s, 0 offen offset:1024 nt lds" % (oWO, WO), tag="l2")
    I("s_add_u32 m0, %s, %d" % (sB, WDI))
    I("buffer_load_dwordx4 %s, %s, 0 offen nt lds" % (oWD, DN), tag="l2")
I("s_cmp_ge_u32 %s, 4" % sW)
br("s_cbranch_scc1 L_B_hi")
k.vms = [[]]
if PRIO: I("s_setprio 2")
D1a, D2a, D1b, D2b = ACC, ACC + 4, ACC + 8, ACC + 12
qk_reads(0)
if PF1:
    I("s_bitcmp1_b32 s2, 3")
    br("s_cbranch_scc1 L_nopf1")
    I("s_mov_b32 m0, %d" % SCR)
    I("v_lshlrev_b32 %s, 4, %s" % (vA, vN)); I("v_lshl_add_u32 %s, %s, 13, %s" % (vA, vS, vA))
    I("s_lshl_b32 %s, %s, 15" % (sA, sW)); I("s_add_u32 %s, %s, %s" % (sA, sA, sD))
    for r in range(PF1):
        I("buffer_load_dwordx4 %s, %s, %s offen nt lds" % (vA, WUV, sA), tag="pf")
        if r < PF1 - 1: I("s_add_u32 %s, %s, 0x20000" % (sA, sA))
    if PF2:
        I("v_lshlrev_b32 %s, 4, %s" % (vA, vN)); I("v_lshl_add_u32 %s, %s, 10, %s" % (vA, vS, vA))
        I("s_lshl_b32 %s, %s, 17" % (sA, sH)); I("s_lshl_b32 %s, %s, 7" % (sB, sJ)); I("s_add_u32 %s, %s, %s" % (sA, sA, sB)); I("s_lshl_b32 %s, %s, 12" % (sB, sW)); I("s_add_u32 %s, %s, %s" % (sA, sA, sB))
        for r in range(PF2):
            I("buffer_load_dwordx4 %s, %s, %s offen nt lds" % (vA, WO, sA), tag="pf")
            if r < PF2 - 1: I("s_add_u32 %s, %s, 0x4000" % (sA, sA))
    label("L_nopf1")
lgkm(0)
I("v_readfirstlane_b32 %s, %s" % (sLoc, vB))
I("s_barrier")
stamp("B3")
for ks in range(8):
    I("ds_read_b128 %s, %s offset:%d" % (V(QB + 4*ks, 4), aQr, Q_ + 64*ks))
border = []
for ks in range(8): border += [ks, 8 + ks]
def rdb(i): I("ds_read_b128 %s, %s offset:%d" % (V(FR + 64 + 4*border[i], 4), aQKb, 64*border[i]))
for i in range(6): rdb(i)
gu_loads()
I("buffer_load_ushort %s, %s, %s, 0 offen" % (vX, oOut, X), tag="l1")
nb = 6
for ks in range(8):
    k.lgkm(7 - ks + nb)
    mfma(D1a, FR + 4*ks, QB + 4*ks, "0" if ks == 0 else D1a)
    mfma(D2a, FR + 32 + 4*ks, QB + 4*ks, "0" if ks == 0 else D2a)
    if nb < 16 and 7 - ks + nb < 14: rdb(nb); nb += 1
    if nb < 16 and ks >= 5: rdb(nb); nb += 1
while nb < 16: rdb(nb); nb += 1
for ks in range(8):
    k.lgkm(14 - 2*ks)
    mfma(D1b, FR + 64 + 4*ks, QB + 4*ks, "0" if ks == 0 else D1b)
    mfma(D2b, FR + 96 + 4*ks, QB + 4*ks, "0" if ks == 0 else D2b)
Sx = ACC + 16; mx, mt = ACC + 24, ACC + 25
for r in range(4): I("v_add_f32_dpp %s, %s, %s row_ror:8 row_mask:0xf bank_mask:0x3" % (V(Sx + r), V(D2a + r), V(D1a + r)))
for r in range(4): I("v_add_f32_dpp %s, %s, %s row_ror:8 row_mask:0xf bank_mask:0xc" % (V(Sx + r), V(D1b + r), V(D2b + r)))
I("v_max3_f32 %s, %s, %s, %s" % (V(mx), V(Sx), V(Sx + 1), V(Sx + 2)))
I("v_max_f32 %s, %s, %s" % (V(mx), V(mx), V(Sx + 3)))
I("v_max_f32_dpp %s, %s, %s row_ror:8%s" % (V(mx), V(mx), V(mx), DPP))
for sw in ("16", "32"):
    I("v_mov_b32 %s, %s" % (V(mt), V(mx)))
    I("v_permlane%s_swap_b32 %s, %s" % (sw, V(mx), V(mt)))
    I("v_max_f32 %s, %s, %s" % (V(mx), V(mx), V(mt)))
I("s_mov_b64 exec, 0xff")
I("ds_write_b32 %s, %s offset:%d" % (aMXw, V(mx), MX))
ex(-1)
lgkm(0)
I("s_barrier")
stamp("B4a")
I("ds_read_b128 %s, %s offset:%d" % (V(ACC, 4), aMXr, MX))
lgkm(0)
I("v_max3_f32 %s, %s, %s, %s" % (V(mx), V(ACC), V(ACC + 1), V(ACC + 2)))
I("v_max_f32 %s, %s, %s" % (V(mx), V(mx), V(ACC + 3)))
for r in range(4): I("v_sub_f32 %s, %s, %s" % (V(Sx + r), V(Sx + r), V(mx)))
for r in range(4): I("v_exp_f32 %s, %s" % (V(Sx + r), V(Sx + r)))
I("v_cvt_pk_bf16_f32 %s, %s, %s" % (V(ACC), V(Sx), V(Sx + 1)))
I("v_cvt_pk_bf16_f32 %s, %s, %s" % (V(ACC + 1), V(Sx + 2), V(Sx + 3)))
I("ds_write_b64 %s, %s offset:%d" % (aPw, V(ACC, 2), P_))
lgkm(0)
I("s_barrier")
stamp("B4b")
if PRIO: I("s_setprio 0")
HBF = QB
GUF = QB + 8; UVF = QB + 16; H = QB + 24; HF_ = QB + 32; OF = QB + 40
Z = ACC
for r in range(8): I("v_mov_b32 %s, 0" % V(HBF + r))
I("s_cmp_ge_u32 %s, 22" % sFS)
br("s_cbranch_scc1 L_B_end")
I("v_mov_b32 %s, 0" % vA); I("v_mov_b32 %s, 1" % vB)
k.wait_vm("l1")
ex(1)
I("ds_add_u32 %s, %s offset:%d" % (vA, vB, CNT))
ex(-1)
I("s_mov_b32 %s, 0" % sSpin)
k.label("L_cw")
I("s_sleep 1")
I("ds_read_b32 %s, %s offset:%d" % (vB, vA, CNT))
I("s_add_u32 %s, %s, 1" % (sSpin, sSpin))
I("s_cmp_gt_u32 %s, %d" % (sSpin, SPIN_MAX))
I("s_cbranch_scc1 L_END")
lgkm(0)
I("v_cmp_ne_u32 vcc, 4, %s" % vB)
I("s_cbranch_vccnz L_cw")
for z in range(4): I("ds_read_b64_tr_b16 %s, %s offset:%d" % (V(GUF + 2*z, 2), aTrF, 128*z))
for z in range(4): I("ds_read_b64_tr_b16 %s, %s offset:%d" % (V(UVF + 2*z, 2), aTrF, UI - GI + 128*z))
I("v_mov_b32 %s, %s" % (V(ACC + 8), sT)); I("v_mov_b32 %s, %s" % (V(ACC + 9), sT2))
k.lgkm(4)
mfma(ACC, GUF, XF, "0"); mfma(ACC + 12, GUF, ONE, "0")
mfma(ACC, GUF + 4, XF + 4, ACC); mfma(ACC + 12, GUF + 4, ONE, ACC + 12)
lgkm(0)
mfma(ACC + 4, UVF, XF, "0"); mfma(ACC + 16, UVF, ONE, "0")
mfma(ACC + 4, UVF + 4, XF + 4, ACC + 4); mfma(ACC + 16, UVF + 4, ONE, ACC + 16)
for r in range(8): I("v_fmac_f32 %s, %s, %s" % (V(ACC + r), V(ACC + 12 + r), vNM))
I("v_cvt_pk_bf16_f32 %s, %s, %s" % (V(GR + 2), V(ACC), V(ACC + 1)))
I("v_cvt_pk_bf16_f32 %s, %s, %s" % (V(GR + 3), V(ACC + 2), V(ACC + 3)))
I("v_cvt_pk_bf16_f32 %s, %s, %s" % (V(ACC + 10), V(ACC + 4), V(ACC + 5)))
I("v_cvt_pk_bf16_f32 %s, %s, %s" % (V(ACC + 11), V(ACC + 6), V(ACC + 7)))
ex(mkJ)
lstore(["buffer_store_dwordx4 %s, %s, %s, %s offen" % (V(GR, 4), oPub, WS, sHFp), "buffer_store_dwordx4 %s, %s, %s, %s offen offset:512" % (V(ACC + 8, 4), oPub, WS, sHFp)])
ex(-1)
stamp("F1pub")
br("s_branch L_B_end")
label("L_B_hi")
k.vms = [list(l) for l in hi_vms]
if PRIO: I("s_setprio 1")
UV_AT = knob("UV_AT", 0)
pv_reads(0)
I("s_bitcmp1_b32 s2, 3")
br("s_cbranch_scc1 L_h1iss")
ld_h1("h1")
label("L_h1iss")
gather("h1", ld_h1, check64([ACC, ACC + 4, ACC + 8, ACC + 12]), issued=True)
for u in range(4):
    I("ds_write_b64 %s, %s offset:%d" % (aQw, V(ACC + 4*u + 2, 2), Q_ + (8*(u & 1) + 4*(u >> 1))*544))
k.wait_vm("ckB", lgkm=0); flush()
I("v_readfirstlane_b32 %s, %s" % (sLoc, vB))
I("s_barrier")
if UV_AT == 0: uv_loads()
pv_reads(1)
O = QB; PF_ = QB + 32
G = [ACC, ACC + 4]; GS = ACC + 8
I("v_mov_b32 %s, %s" % (V(GS + 2), sT)); I("v_mov_b32 %s, %s" % (V(GS + 3), sT2))
I("s_movk_i32 %s, 0x2000" % sA)
I("s_lshl2_add_u32 %s, %s, %s" % (sB, sTile, sHG)); I("s_lshl_b32 %s, %s, 7" % (sB, sB)); I("s_add_u32 %s, %s, 0x%x" % (sB, sB, WS_HS))
I("s_cmp_eq_u32 %s, 4" % sW); I("s_cselect_b32 %s, %s, 0x7f000000" % (sB, sB))
I("s_barrier")
I("ds_read_b128 %s, %s offset:%d" % (V(Sx, 4), aMXr_h, MX))
lgkm(0)
I("v_max3_f32 %s, %s, %s, %s" % (V(GS), V(Sx), V(Sx + 1), V(Sx + 2)))
I("v_max_f32 %s, %s, %s" % (V(GS), V(GS), V(Sx + 3)))
I("s_barrier")
for kp in range(4):
    I("ds_read_b128 %s, %s offset:%d" % (V(PF_ + 4*kp, 4), aPr, P_ + 64*kp))
def epi(p):
    ops = []
    for r in range(4): ops.append("v_cndmask_b32 %s, %s, %s, %s" % (V(Sx + r), V(O + 8*p + r), V(O + 8*p + 4 + r), sHi))
    ops.append("v_cvt_pk_bf16_f32 %s, %s, %s" % (V(G[p >> 1] + 2*(p & 1)), V(Sx), V(Sx + 1)))
    ops.append("v_cvt_pk_bf16_f32 %s, %s, %s" % (V(G[p >> 1] + 2*(p & 1) + 1), V(Sx + 2), V(Sx + 3)))
    if p & 1: ops.append(("buffer_store_dwordx4 %s, %s, %s, %s offen sc1" % (V(G[p >> 1], 4), oH2p, WS, sA if p >= 2 else "0"), "st2"))
    return ops
LS = ACC + 20
fill = []
def emit_fill(n):
    for _ in range(n):
        if not fill: return
        o = fill.pop(0)
        if isinstance(o, tuple): I(o[0], tag=o[1])
        else: I(o)
for p in range(4):
    for kp in range(4):
        if p == 0: k.lgkm(3 - kp)
        for e in range(2):
            t = 2*p + e
            mfma(O + 4*t, FR + 16*t + 4*kp, PF_ + 4*kp, "0" if kp == 0 else O + 4*t)
            if p == 0 and e == 1: mfma(LS, XF, PF_ + 4*kp, "0" if kp == 0 else LS)
            if p > 0 and kp == 2 and e == 1:
                assert not fill
                fill[:0] = epi(p - 1)
            emit_fill(2)
    if p == 1:
        emit_fill(100)
        I("v_mov_b32 %s, %s" % (V(GS + 1), V(LS)))
        I("s_mov_b64 exec, 0xff")
        I("buffer_store_dwordx4 %s, %s, %s, %s offen sc1" % (V(GS, 4), vL16, WS, sB), tag="st2")
        ex(-1)
emit_fill(100)
for o in epi(3): fill.append(o)
emit_fill(100)
stamp("Bpub")
if PRIO: I("s_setprio 0")
if UV_AT == 1: uv_loads()
k.wait_vm("st2")
stamp("st2ack")
label("L_B_end")
I("s_barrier")
stamp("B5")
I("s_mov_b32 %s, 0x%x" % (sC, SENT))
def ld_h2(tag):
    I("buffer_load_dwordx4 %s, %s, %s, 0 offen sc1" % (V(H, 4), oH2, WS), tag=tag)
    I("buffer_load_dwordx4 %s, %s, %s, 0 offen sc1" % (V(H + 4, 4), oHS, WS), tag=tag)
def chk_h2():
    I("v_cmp_eq_u32 vcc, %s, %s" % (sC, V(H + 3)))
    I("v_cmp_ne_u64 %s, %s, %s" % (sM, sTT, V(H + 6, 2)))
    I("s_or_b64 vcc, vcc, %s" % sM)
def uv_reads():
    for z in range(4): I("ds_read_b64_tr_b16 %s, %s offset:%d" % (V(UVF + 2*z, 2), aTrA, WUVI + 256*z))
def after_h2():
    if UV_AT == 0: uv_reads()
    if L2_AT == 0:
        I("s_barrier")
        l2_loads()
gather("h2", ld_h2, chk_h2, after_first=after_h2)
mw, wt, tt = ACC + 8, ACC + 9, ACC + 10
I("v_max_f32_dpp %s, %s, %s row_ror:8%s" % (V(mw), V(H + 4), V(H + 4), DPP))
for u in range(2):
    I("v_lshlrev_b32 %s, 16, %s" % (V(Z + 4*u), V(H + 2*u)))
    I("v_and_b32 %s, 0xffff0000, %s" % (V(Z + 4*u + 1), V(H + 2*u)))
for n_, sw in enumerate(("16", "32")):
    I("v_mov_b32 %s, %s" % (V(tt), V(mw)))
    I("v_lshlrev_b32 %s, 16, %s" % (V(Z + 4*n_ + 2), V(H + 2*n_ + 1)))
    I("v_and_b32 %s, 0xffff0000, %s" % (V(Z + 4*n_ + 3), V(H + 2*n_ + 1)))
    I("v_permlane%s_swap_b32 %s, %s" % (sw, V(mw), V(tt)))
    I("v_max_f32 %s, %s, %s" % (V(mw), V(mw), V(tt)))
I("v_sub_f32 %s, %s, %s" % (V(wt), V(H + 4), V(mw)))
I("v_exp_f32 %s, %s" % (V(wt), V(wt)))
for r in range(8): I("v_mul_f32 %s, %s, %s" % (V(Z + r), V(Z + r), V(wt)))
lw = mw + 1
I("v_mul_f32 %s, %s, %s" % (V(lw), V(H + 5), V(wt)))
for r in range(4): I("v_permlane16_swap_b32 %s, %s" % (V(Z + r), V(Z + 4 + r)))
for r in range(4): I("v_add_f32 %s, %s, %s" % (V(Z + r), V(Z + r), V(Z + 4 + r)))
I("v_add_f32_dpp %s, %s, %s row_ror:8%s" % (V(lw), V(lw), V(lw), DPP))
for r in range(2): I("v_permlane32_swap_b32 %s, %s" % (V(Z + r), V(Z + 2 + r)))
I("v_mov_b32 %s, %s" % (V(tt), V(lw)))
for r in range(2): I("v_add_f32 %s, %s, %s" % (V(Z + r), V(Z + r), V(Z + 2 + r)))
I("v_permlane16_swap_b32 %s, %s" % (V(lw), V(tt)))
for r in range(2): I("v_add_f32_dpp %s, %s, %s row_ror:8%s" % (V(Z + r), V(Z + r), V(Z + r), DPP))
I("v_add_f32 %s, %s, %s" % (V(lw), V(lw), V(tt)))
I("v_cvt_pk_bf16_f32 %s, %s, %s" % (V(Z), V(Z), V(Z + 1)))
I("v_mov_b32 %s, %s" % (V(tt), V(lw)))
ex(mk8)
I("ds_write_b32 %s, %s offset:%d" % (aOWw, V(Z), OW))
ex(-1)
I("v_permlane32_swap_b32 %s, %s" % (V(lw), V(tt)))
I("v_add_f32 %s, %s, %s" % (V(lw), V(lw), V(tt)))
ex(1)
I("ds_write_b64 %s, %s offset:%d" % (aOWw, V(mw, 2), OW + 128))
ex(-1)
lgkm(0)
I("s_barrier")
stamp("B6")
I("ds_read_b64 %s, %s offset:%d" % (V(mw, 2), aST2r, OW + 128))
I("ds_read_b128 %s, %s offset:%d" % (V(OF, 4), aOWr, OW))
I("ds_read_b128 %s, %s offset:%d" % (V(OF + 4, 4), aOWr, OW + 64))
if UV_AT == 1: uv_reads()
if L2_AT == 1: l2_loads()
k.lgkm(6 if UV_AT == 1 else 2)
mb_ = ACC + 11; e_ = ACC + 12
I("v_max_f32_dpp %s, %s, %s row_ror:4%s" % (V(mb_), V(mw), V(mw), DPP))
I("v_max_f32_dpp %s, %s, %s row_ror:2%s" % (V(mb_), V(mb_), V(mb_), DPP))
lgkm(0)
mfma(ACC, UVF, OF, "0")
mfma(ACC, UVF + 4, OF + 4, ACC)
I("v_sub_f32 %s, %s, %s" % (V(e_), V(mw), V(mb_)))
I("v_exp_f32 %s, %s" % (V(e_), V(e_)))
I("v_mul_f32 %s, %s, %s" % (V(lw), V(lw), V(e_)))
I("v_add_f32_dpp %s, %s, %s row_ror:4%s" % (V(lw), V(lw), V(lw), DPP))
I("v_add_f32_dpp %s, %s, %s row_ror:2%s" % (V(lw), V(lw), V(lw), DPP))
I("v_rcp_f32 %s, %s" % (V(lw), V(lw)))
I("v_mul_f32 %s, %s, %s" % (V(e_), V(e_), V(lw)))
for r in range(4): I("v_mul_f32 %s, %s, %s" % (V(ACC + r), V(ACC + r), V(e_)))
red_j((4, 2))
I("v_cvt_pk_bf16_f32 %s, %s, %s" % (V(GR + 2), V(ACC), V(ACC + 1)))
I("v_cvt_pk_bf16_f32 %s, %s, %s" % (V(GR + 3), V(ACC + 2), V(ACC + 3)))
ex(mk2)
lstore(["buffer_store_dwordx4 %s, %s, %s, %s offen" % (V(GR, 4), oPub, WS, sH25p)])
ex(-1)
stamp("Cpub")
I("s_cmp_ge_u32 %s, 4" % sW)
br("s_cbranch_scc1 L_f2")
I("s_add_u32 %s, %s, 4096" % (sC, sH25g))
k.wait_vm0()
def ld_h25(tag):
    I("buffer_load_dwordx4 %s, %s, %s, %s offen sc1" % (V(H, 4), vL16, WS, sH25g), tag=tag)
    I("buffer_load_dwordx4 %s, %s, %s, %s offen sc1" % (V(H + 4, 4), vL16, WS, sC), tag=tag)
WOF = FR; WDF = FR + 16; CPF = FR + 24
def after_h25():
    I("s_barrier")
    for z in range(8): I("ds_read_b64_tr_b16 %s, %s offset:%d" % (V(WOF + 2*z, 2), aTrA, WOI + 128*z))
    for z in range(4): I("ds_read_b64_tr_b16 %s, %s offset:%d" % (V(WDF + 2*z, 2), aTrF, WDI - GI + 128*z))
gather("h25", ld_h25, check64([H, H + 4]), after_first=after_h25)
I("ds_write_b64 %s, %s offset:%d" % (aCPw, V(H + 2, 2), CP))
I("ds_write_b64 %s, %s offset:%d" % (aCPw, V(H + 6, 2), CP + 4*576))
lgkm(0)
I("s_barrier")
stamp("B7")
for ks in range(4):
    I("ds_read_b128 %s, %s offset:%d" % (V(CPF + 4*ks, 4), aCPr, CP + 64*ks))
I("s_cmp_ge_u32 %s, 22" % sFS)
br("s_cbranch_scc1 L_d_nof")
ex(mk2)
I("ds_read_b128 %s, %s offset:%d" % (V(HBF, 4), aHBr, HB))
I("ds_read_b128 %s, %s offset:%d" % (V(HBF + 4, 4), aHBr, HB + 64))
ex(-1)
label("L_d_nof")
lgkm(0)
for ks in range(4): mfma(ACC, WOF + 4*ks, CPF + 4*ks, "0" if ks == 0 else ACC)
for ks in range(2): mfma(ACC, WDF + 4*ks, HBF + 4*ks, ACC)
red_j((8, 4, 2))
publish(sH3p)
stamp("Dpub")
br("s_branch L_fin")
label("L_f2")
def ld_hf(tag):
    for u in range(2):
        I("buffer_load_dwordx4 %s, %s, %s, 0 offen offset:%d sc1" % (V(HF_ + 4*u, 4), oHF, WS, 512*u), tag=tag)
ld_hf("hf")
k.wait_vm("l2")
I("s_barrier")
I("s_cmp_ge_u32 %s, 22" % sFS)
br("s_cbranch_scc1 L_b7")
gather("hf", ld_hf, check64([HF_, HF_ + 4]), issued=True)
for u in range(2):
    for p in range(2):
        I("v_lshlrev_b32 %s, 16, %s" % (V(Z + 4*u + 2*p), V(HF_ + 4*u + 2 + p)))
        I("v_and_b32 %s, 0xffff0000, %s" % (V(Z + 4*u + 2*p + 1), V(HF_ + 4*u + 2 + p)))
for ctl in ("quad_perm:[1,0,3,2]", "quad_perm:[2,3,0,1]", "row_half_mirror"):
    for r in range(8): I("v_add_f32_dpp %s, %s, %s %s%s" % (V(Z + r), V(Z + r), V(Z + r), ctl, DPP))
I("v_mul_f32 %s, 0xbfb8aa3b, %s" % (V(Z + 8), vSC))
for r in range(4): I("v_mul_f32 %s, %s, %s" % (V(Z + r), V(Z + 8), V(Z + r)))
for r in range(4): I("v_exp_f32 %s, %s" % (V(Z + r), V(Z + r)))
for r in range(4): I("v_mul_f32 %s, %s, %s" % (V(Z + 4 + r), vSC, V(Z + 4 + r)))
for r in range(4): I("v_add_f32 %s, 1.0, %s" % (V(Z + r), V(Z + r)))
for r in range(4): I("v_rcp_f32 %s, %s" % (V(Z + r), V(Z + r)))
for r in range(4): I("v_mul_f32 %s, %s, %s" % (V(Z + r), V(Z + r), V(Z + 4 + r)))
I("v_cvt_pk_bf16_f32 %s, %s, %s" % (V(Z), V(Z), V(Z + 1)))
I("v_cvt_pk_bf16_f32 %s, %s, %s" % (V(Z + 1), V(Z + 2), V(Z + 3)))
ex32(0x01010101)
I("ds_write_b64 %s, %s offset:%d" % (aHBw, V(Z, 2), HB))
ex(-1)
label("L_b7")
lgkm(0)
I("s_barrier")
stamp("B7")
br("s_branch L_OUT")
label("L_fin")
I("s_cmp_lg_u32 %s, 0" % sW)
br("s_cbranch_scc1 L_OUT")
I("s_cmp_ge_u32 s2, 32")
br("s_cbranch_scc1 L_OUT")
H = FR + 64
I("s_lshl_b32 %s, s2, 12" % sC); I("s_add_u32 %s, %s, 0x%x" % (sC, sC, WS_H3))
def ld_h3(tag):
    for u in range(4):
        I("buffer_load_dwordx4 %s, %s, %s, %s offen offset:%d sc1" % (V(H + 4*u, 4), vL16, WS, sC, 1024*u), tag=tag)
I("v_lshlrev_b32 %s, 16, %s" % (vX, vX))
gather("h3", ld_h3, check64([H, H + 4, H + 8, H + 12]))
for u in range(4):
    for p in range(2):
        I("v_lshlrev_b32 %s, 16, %s" % (V(Z + 4*u + 2*p), V(H + 4*u + 2 + p)))
        I("v_and_b32 %s, 0xffff0000, %s" % (V(Z + 4*u + 2*p + 1), V(H + 4*u + 2 + p)))
for r in range(4):
    I("v_add_f32 %s, %s, %s" % (V(Z + r), V(Z + r), V(Z + 4 + r)))
    I("v_add_f32 %s, %s, %s" % (V(Z + 8 + r), V(Z + 8 + r), V(Z + 12 + r)))
for r in range(4): I("v_add_f32 %s, %s, %s" % (V(Z + r), V(Z + r), V(Z + 8 + r)))
I("v_permlane16_swap_b32 %s, %s" % (V(Z), V(Z + 1)))
I("v_permlane16_swap_b32 %s, %s" % (V(Z + 2), V(Z + 3)))
I("v_add_f32 %s, %s, %s" % (V(Z), V(Z), V(Z + 1)))
I("v_add_f32 %s, %s, %s" % (V(Z + 2), V(Z + 2), V(Z + 3)))
I("v_permlane32_swap_b32 %s, %s" % (V(Z), V(Z + 2)))
I("v_add_f32 %s, %s, %s" % (V(Z), V(Z), V(Z + 2)))
I("v_add_f32_dpp %s, %s, %s row_ror:8%s" % (V(Z), V(Z), V(Z), DPP))
I("v_add_f32 %s, %s, %s" % (V(Z), V(Z), vX))
I("v_cvt_pk_bf16_f32 %s, %s, %s" % (V(Z), V(Z), V(Z)))
ex(mk8)
I("buffer_store_short %s, %s, %s, 0 offen" % (V(Z), oOut, OUT), tag="st")
I("s_cmp_lg_u32 s2, 0")
br("s_cbranch_scc1 L_OUT")
ex(1)
I("buffer_store_dword %s, %s, %s, 0 offen sc1" % (V(GR), vL16, WS), tag="st")
label("L_OUT")
DBL = os.environ["DBL"]; KK = knob("KK", 10)
ex(-1)
stamp("end")
flush(True)
I("s_load_dwordx2 s[4:5], s[0:1], 88")
I("s_mov_b32 s6, 256"); I("s_mov_b32 s7, 0x20000")
I("v_readlane_b32 %s, %s, 0" % (sA, vST))
I("v_readlane_b32 %s, %s, %d" % (sB, vST, names.index(DBL)))
I("s_not_b32 %s, %s" % (sA, sA))
I("v_mov_b32 %s, %s" % (vA, sA)); I("v_mov_b32 %s, %s" % (vB, sB)); I("v_mov_b32 %s, 0" % vC)
lgkm(0)
I("s_and_b32 %s, %s, 3" % (sA, sW)); I("s_cmp_lg_u32 %s, 0" % sA); I("s_cbranch_scc1 L_END")
ex(1)
I("buffer_atomic_umax %s, %s, s[4:7], 0 offen sc1" % (vA, vC))
I("buffer_atomic_umax %s, %s, s[4:7], 0 offen offset:128 sc1" % (vB, vC))
I("s_or_b32 %s, %s, s2" % (sA, sW)); I("s_cmp_lg_u32 %s, 0" % sA); I("s_cbranch_scc1 L_END")
def spin(reg, nm):
    I("s_memrealtime s[8:9]"); k.lgkm(0)
    k.label(nm)
    I("s_memrealtime s[10:11]"); k.lgkm(0)
    I("s_sub_u32 %s, s10, s8" % sB); I("s_cmp_lt_u32 %s, %s" % (sB, reg)); I("s_cbranch_scc1 %s" % nm)
I("s_movk_i32 %s, 1500" % sC)
spin(sC, "L_sp1")
I("buffer_load_dword %s, %s, s[4:7], 0 offen sc1" % (vA, vC))
I("buffer_load_dword %s, %s, s[4:7], 0 offen offset:128 sc1" % (vB, vC))
I("s_waitcnt vmcnt(0)")
I("v_readfirstlane_b32 %s, %s" % (sA, vA)); I("v_readfirstlane_b32 %s, %s" % (sC, vB))
I("s_not_b32 %s, %s" % (sA, sA)); I("s_sub_u32 %s, %s, %s" % (sC, sC, sA)); I("s_min_u32 %s, %s, 3000" % (sC, sC)); I("s_mul_i32 %s, %s, %d" % (sC, sC, KK))
spin(sC, "L_sp2")
k.label("L_END")
I("s_endpgm")
k.raw("L_CODE_END:")
k.raw('''.section .rodata,"a"
.p2align 6
.amdhsa_kernel %s
  .amdhsa_next_free_vgpr 256
  .amdhsa_next_free_sgpr 102
  .amdhsa_accum_offset 256
  .amdhsa_group_segment_fixed_size 0
  .amdhsa_kernarg_size 104
  .amdhsa_user_sgpr_count 2
  .amdhsa_user_sgpr_kernarg_segment_ptr 1
  .amdhsa_system_sgpr_workgroup_id_x 1
  .amdhsa_float_denorm_mode_32 3
.end_amdhsa_kernel''' % KN)
import subprocess, re
def addrs(lines):
    open("_g.s", "w").write("\n".join(lines) + "\n")
    subprocess.run(["clang", "-x", "assembler", "-target", "amdgcn-amd-amdhsa", "-mcpu=gfx950", "-c", "_g.s", "-o", "_g.o"], check=True)
    d = subprocess.run(["llvm-objdump", "-d", "--mcpu=gfx950", "_g.o"], capture_output=True, text=True).stdout
    return [int(m.group(1), 16) for m in re.finditer(r"// ([0-9A-F]{12}):", d)]
lines = k.text().split("\n")
if PF:
    NST = 8
    tmp = list(lines)
    e = tmp.index("L_CODE_END:")
    tmp[e:e] = ["L_stub_%d:" % i for i in range(NST)] + ["    s_endpgm"]
    ad = addrs(tmp)
    idx = [i for i, l in enumerate(lines) if l.startswith("    ") and not l.strip().startswith(";")]
    idx = idx[:k.count]
    first = ad[idx.index(lines.index("L_pc_end:") + 1)]
    start = (first // 1024 + 1) * 1024
    ins = []; shift = 0; nxt = start
    lim = lines.index("L_OUT:")
    for n, li in enumerate(idx):
        if li > lim: break
        if ad[n] + shift >= nxt and len(ins) < NST:
            ins.append(li); shift += 4; nxt += 1024
    assert len(ins) < NST
    for j in range(len(ins) - 1, -1, -1):
        tgt = "L_stub_%d" % (j + 4) if j + 4 < len(ins) else "L_back"
        lines[ins[j]:ins[j]] = ["L_stub_%d:" % j, "    s_cbranch_execz %s" % tgt]
    assert len(ins) >= 4
open(sys.argv[1], "w").write("\n".join(lines) + ("; STAMPS " + ",".join(names) + "\n" if STAMP else ""))
print("instructions:", k.count, "stamps:", len(names), "lds:", LDS_SIZE, "sgpr:", _s[0], file=sys.stderr)
```

```python
import sys, os, math, struct
from asmlib import Asm
KN = "parallel_sum__compressed_kv_cla__glu_gated_glu__decode_kernel"
def knob(name, d): return int(os.environ.get(name, d))
STAMP = knob("STAMP", 0)
SPIN_MAX = 20000
R0 = knob("R0", 0)
GO = knob("GO", 1)
TLB = 0
LOCAL = knob("LOCAL", 1)
NL = knob("NL", 6)
K_FLY = knob("K_FLY", 40)
K_FLYB = knob("K_FLYB", 40)
L1_AT = knob("L1_AT", 0)
L2_AT = knob("L2_AT", 0)
PF = knob("PF", 1)
PRIO = knob("PRIO", 1)
PT3 = knob("PT3", 1)

WS_H0 = 0x10000; WS_H1 = 0x50000; WS_H25 = 0x70000; WS_HF = 0xb0000; WS_H3 = 0xf0000; WS_H0L = 0x110000; WS_H2 = 0x200000
WS_STAMP = 0x800000; WS_SIZE = 0x10000000
Q_ = 0; P_ = 8704; MX = 11008; OW = 11520; HB = 12864; CP = 0
QP = 16896; XI = QP; CNT = QP + 4608; LOC = CNT + 4
CKV = QP + 4608 + 128
WQI = CKV + 112*1056
WUKI = CKV
WUVI = CKV; WOI = CKV + 16896; GI = CKV + 33792; UI = CKV + 42240; WDI = CKV + 50688
SCR = CKV + 128*1056
LDS_SIZE = SCR + 1024
PF1 = knob('PF1', 0)
CLR = knob('CLR', 4)
SENT = 0x7f817f81
WS_HS = 0x150000
PF2 = knob('PF2', 0)
X, CK, WQ, WUK, WUV, WO, GA, UP, DN, OUT, WS = ["s[%d:%d]" % (4 + 4*k, 7 + 4*k) for k in range(11)]
_s = [48]
def S(n=1):
    if n == 2 and _s[0] & 1: _s[0] += 1
    r = _s[0]; _s[0] += n
    assert _s[0] <= 102
    return "s%d" % r if n == 1 else "s[%d:%d]" % (r, r + 1)
sW = "s3"
sTT = S(2); sT = "s48"; sT2 = "s49"
sM = S(2); sHi = S(2); mk2 = S(2); mk8 = S(2); mkJ = S(2); sPC = S(2); sTX = S(2)
sX8, sI, sJ, sH, sG, sHG, sTile, sFS, sGrp, sW4 = [S() for _ in range(10)]
sA, sB, sC, sD, sSpin, sOnes = [S() for _ in range(6)]
sCKo = S(); sCKm = S()
sHFp, sH25p, sH25g, sH3p, sUV, sWD, sW2112 = [S() for _ in range(7)]
sL1a, sL1m = S(), S()
sLoc, sRS = S(), S()
sTXa, sT2x = ['s' + x for x in sTX[2:-1].split(':')]
STP = [S(2) for _ in range(3)]
_v = [1]
def Vn():
    r = _v[0]; _v[0] += 1
    return "v%d" % r
def V(a, n=1): return "v%d" % a if n == 1 else "v[%d:%d]" % (a, a + n - 1)
vL, vN, vS, vL16, vS16, vL7, vTr, vF16 = [Vn() for _ in range(8)]
vA, vB, vC = Vn(), Vn(), Vn()
aTrA, oPub, oH1, aQw, oH2, aOWw, aOWr, aST2r, oWO, oWD = [Vn() for _ in range(10)]
r0, r1, r2, r3, r4, r5, r6, r7, r8, r9, r10 = [Vn() for _ in range(11)]
vST = Vn()
vSC, vX = Vn(), Vn()
assert _v[0] <= 36, _v[0]
NM = 36
vNM, vRS = V(36), V(37)
XF = 40; GR = 48; ACC = 52; QB = 80; FR = 128
aQKa, aQKb, aQr, aMXw, aMXr, aPw, oOut, aHBr, aTrF, aCPw, aCPr = r0, r1, r2, r3, r4, r5, r6, r7, r8, r9, r10
oGU = V(QB + 40)
aPVa, aPVb, aPr, oH2p, aMXr_h, oHF, aHBw = r0, r1, r2, r3, r4, r5, r6
oHS = vTr

k = Asm()
I = k.I
names = []; pend = []
ONLY = [x for x in os.environ.get("ONLY", "").split(",") if x]
def flush(force=False):
    if not pend: return
    if force: I("s_waitcnt lgkmcnt(0)")
    for (n, p) in pend: I("v_writelane_b32 %s, s%s, %d" % (vST, p[2:].split(":")[0], n))
    pend.clear()
def stamp(name):
    if not STAMP or (ONLY and name not in ONLY): return
    if name not in names: names.append(name)
    if len(pend) == 3: flush(True)
    used = [p for _, p in pend]
    p = [x for x in STP if x not in used][0]
    I("s_memrealtime %s" % p)
    pend.append((names.index(name), p))
def lgkm(n=0):
    k.lgkm(n)
    if n == 0: flush()
def br(text):
    flush(True); I(text)
def label(L):
    flush(True) if not k.dead else pend.clear()
    k.label(L)
def ex(m): I("s_mov_b64 exec, %s" % m)
def ex32(val): I("s_mov_b32 exec_lo, 0x%08x" % val); I("s_mov_b32 exec_hi, 0x%08x" % val)
def mfma(d, a, b, c):
    I("v_mfma_f32_16x16x32_bf16 %s, %s, %s, %s" % (V(d, 4), V(a, 4), V(b, 4), V(c, 4) if isinstance(c, int) else c))
DPP = " row_mask:0xf bank_mask:0xf"
def setmask(mk, val):
    a_, b_ = mk[2:-1].split(":")
    I("s_mov_b32 s%s, 0x%08x" % (a_, val)); I("s_mov_b32 s%s, 0x%08x" % (b_, val))
def code_prefetch():
    if not PF: return
    lo_, hi_ = sPC[2:-1].split(":")
    L = k.newlabel("L_pc")
    I("s_getpc_b64 %s" % sPC)
    k.raw(L + ":")
    I("s_sub_u32 s%s, s%s, %s - %s" % (lo_, lo_, L, KN))
    I("s_subb_u32 s%s, s%s, 0" % (hi_, hi_))
    I("s_lshl2_add_u32 %s, %s, %s" % (sL1a, sI, sW))
    I("s_add_u32 %s, %s, 16" % (sL1a, sL1a))
    I("s_min_u32 %s, %s, (L_CODE_END - %s - 4) / 128" % (sL1a, sL1a, KN))
    I("s_lshl_b32 %s, %s, 7" % (sL1a, sL1a))
    I("s_load_dword %s, %s, %s" % (sL1m, sPC, sL1a))
def ckv_rows(z0, z1, throttle=True):
    for z in range(z0, z1):
        fly = K_FLY if z < 16 else K_FLYB
        if throttle and max(len(l) for l in k.vms) >= fly:
            I("s_waitcnt vmcnt(%d)" % (fly - 1))
            for l in k.vms:
                if len(l) > fly - 1: del l[:len(l) - (fly - 1)]
        if z == 16:
            I("s_xor_b32 %s, %s, 0x1c000" % (sCKo, sCKo))
        elif z and (z & 3) == 0:
            I("s_add_u32 %s, %s, 0x4000" % (sCKo, sCKo))
        zz = z & 15
        I("s_add_u32 m0, %s, %d" % (sCKm, (z >> 4) * 64 * 1056 + (zz >> 2) * 4 * 1056 + 32 * (zz & 3)))
        I("buffer_load_dwordx4 %s, %s, %s offen offset:%d nt lds" % (vL16, CK, sCKo, 1024 * (z & 3)), tag="ckA" if z < 16 else "ckB")
def gather(name, loads, check, after_first=None, issued=False):
    Lr = k.newlabel("L_retry_" + name); Ld = k.newlabel("L_done_" + name)
    if not issued: loads(name)
    if after_first: after_first()
    k.wait_vm(name)
    stamp(name + "_1st")
    flush(True)
    check()
    I("s_cbranch_scc0 %s" % Ld)
    I("s_mov_b32 %s, 0" % sSpin)
    k.label(Lr)
    I("s_add_u32 %s, %s, 1" % (sSpin, sSpin))
    I("s_cmp_gt_u32 %s, %d" % (sSpin, SPIN_MAX))
    I("s_cbranch_scc1 L_END")
    loads(name)
    k.wait_vm0()
    check()
    I("s_cbranch_scc1 %s" % Lr)
    k.label(Ld)
    stamp(name + "_ok")
def check64(regs):
    def f():
        for n, r in enumerate(regs):
            I("v_cmp_ne_u64 %s, %s, %s" % ("vcc" if n == 0 else sM, sTT, V(r, 2)))
            if n > 0: I("s_or_b64 vcc, vcc, %s" % sM)
        if len(regs) == 1: I("s_cmp_lg_u64 vcc, 0")
    return f
def check_frags(base, n, sT2=sT2):
    def f():
        acc = ACC + 24
        I("v_xor_b32 %s, %s, %s" % (V(acc), sT, V(base)))
        I("v_xor_b32 %s, %s, %s" % (V(acc + 1), sT2, V(base + 1)))
        for i in range(n):
            for (o, t, a) in ((0, sT, acc), (1, sT2, acc + 1), (6, sT, acc), (7, sT2, acc + 1)):
                if i == 0 and o < 2: continue
                I("v_bitop3_b32 %s, %s, %s, %s bitop3:0xf6" % (V(a), V(a), V(base + 8*i + o), t))
        I("v_cmp_ne_u64 vcc, 0, %s" % V(acc, 2))
        I("s_cmp_lg_u64 vcc, 0")
    return f
def publish(soff, tag="st"):
    I("v_cvt_pk_bf16_f32 %s, %s, %s" % (V(GR + 2), V(ACC), V(ACC + 1)))
    I("v_cvt_pk_bf16_f32 %s, %s, %s" % (V(GR + 3), V(ACC + 2), V(ACC + 3)))
    ex(mk2)
    I("buffer_store_dwordx4 %s, %s, %s, %s offen sc1" % (V(GR, 4), oPub, WS, soff), tag=tag)
    ex(-1)
def lstore(text, tag="st"):
    if not LOCAL:
        for t in text: I(t + " sc1", tag=tag)
        return
    La, Lb = k.newlabel("L_ls"), k.newlabel("L_ls")
    I("s_cmp_eq_u32 %s, 0" % sLoc)
    I("s_cbranch_scc1 %s" % La)
    for t in text: I(t, tag=tag)
    I("s_branch %s" % Lb)
    k.label(La)
    for t in text: I(t + " sc1", tag=tag)
    k.label(Lb)
def red4(D, out):
    t1 = ACC + 16
    for p in range(2):
        for r in range(4):
            I("v_add_f32_dpp %s, %s, %s row_ror:8 row_mask:0xf bank_mask:0x3" % (V(t1 + 4*p + r), V(D + 4*p + r), V(D + 4*p + r)))
        for r in range(4):
            I("v_add_f32_dpp %s, %s, %s row_ror:8 row_mask:0xf bank_mask:0xc" % (V(t1 + 4*p + r), V(D + 8 + 4*p + r), V(D + 8 + 4*p + r)))
    for r in range(4):
        I("v_add_f32_dpp %s, %s, %s row_shl:4 row_mask:0xf bank_mask:0x5" % (V(out + r), V(t1 + r), V(t1 + r)))
    for r in range(4):
        I("v_add_f32_dpp %s, %s, %s row_shr:4 row_mask:0xf bank_mask:0xa" % (V(out + r), V(t1 + 4 + r), V(t1 + 4 + r)))
    for r in range(4):
        I("v_add_f32_dpp %s, %s, %s quad_perm:[2,3,0,1]%s" % (V(out + r), V(out + r), V(out + r), DPP))
def red_j(shs):
    for sh in shs:
        for r in range(4):
            I("v_add_f32_dpp %s, %s, %s row_ror:%d%s" % (V(ACC + r), V(ACC + r), V(ACC + r), sh, DPP))
def role(lo, hi, name):
    I("s_cmp_ge_u32 %s, 4" % sW)
    br("s_cbranch_scc1 L_%s_hi" % name)
    lo()
    br("s_branch L_%s_end" % name)
    label("L_%s_hi" % name)
    hi()
    label("L_%s_end" % name)

hdr = open("cdna_kernels/%s.s.ref" % KN[:-7]).read().split("\n")
for ln in hdr:
    if ln.startswith("; @launch"): break
    k.raw(ln)
k.raw("; @launch grid=(256,1,1) block=(512,1,1) lds=%d" % LDS_SIZE)
k.raw('.amdgcn_target "amdgcn-amd-amdhsa--gfx950"\n.text\n.globl %s\n.p2align 12\n.p2align 8\n.type %s,@function\n%s:' % (KN, KN, KN))
sizes = {4: 2048, 8: 8 << 20, 12: 4 << 20, 16: 4 << 20, 20: 4 << 20, 24: 4 << 20, 28: 512*1376*2, 32: 512*1376*2, 36: 512*1376*2, 40: 2048, 44: WS_SIZE}
for srd, off in ((12, 16), (4, 0), (16, 24), (8, 8), (44, 96)):
    I("s_load_dwordx2 s[%d:%d], s[0:1], %d" % (srd, srd + 1, off))
stamp("entry")
if STAMP: I("v_mov_b32 %s, 0" % vST)
I("s_cmp_ge_u32 s2, 256")
I("s_cbranch_scc1 L_END")
I("v_lshrrev_b32 %s, 6, v0" % vA)
I("v_and_b32 %s, 63, v0" % vL)
I("v_readfirstlane_b32 %s, %s" % (sW, vA))
I("v_and_b32 %s, 15, v0" % vN)
I("v_bfe_u32 %s, v0, 4, 2" % vS)
I("s_and_b32 %s, s2, 7" % sX8)
I("s_bfe_u32 %s, s2, 0x30003" % sJ)
I("s_lshr_b32 %s, s2, 6" % sG)
I("s_lshl2_add_u32 %s, %s, %s" % (sH, sX8, sG))
for srd in (12, 4, 16, 44):
    I("s_mov_b32 s%d, 0x%x" % (srd + 2, sizes[srd])); I("s_mov_b32 s%d, 0x20000" % (srd + 3))
I("v_and_b32 %s, 1, %s" % (vA, vS))
I("v_lshlrev_b32 %s, 15, %s" % (vF16, vA))
I("v_lshrrev_b32 %s, 1, %s" % (vB, vS))
I("v_lshl_add_u32 %s, %s, 18, %s" % (vF16, vB, vF16))
I("v_lshl_add_u32 %s, %s, 4, %s" % (vF16, vN, vF16))
I("s_lshl_b32 %s, %s, 19" % (sD, sJ)); I("s_lshl_b32 %s, %s, 8" % (sC, sH)); I("s_add_u32 %s, %s, %s" % (sD, sD, sC))
I("s_lshr_b32 %s, %s, 1" % (sA, sW)); I("s_and_b32 %s, %s, 1" % (sB, sW))
I("s_lshl2_add_u32 %s, %s, %s" % (sWD, sA, sB))
I("s_lshl_b32 %s, %s, 14" % (sA, sWD)); I("s_add_u32 %s, %s, %s" % (sUV, sD, sA)); I("s_add_u32 %s, %s, 8192" % (sC, sUV))
I("s_mul_i32 %s, %s, 2112" % (sW2112, sW))
I("s_add_u32 m0, %s, %d" % (sW2112, WQI))
I("v_lshlrev_b32 %s, 4, %s" % (vL16, vL))
I("v_lshlrev_b32 %s, 4, %s" % (vS16, vS))
I("v_and_b32 %s, 1, %s" % (r1, vN))
I("v_lshl_add_u32 %s, %s, 10, %s" % (vC, r1, vS16))
I("v_lshrrev_b32 %s, 1, %s" % (vB, vN))
I("v_lshl_add_u32 %s, %s, 7, %s" % (vC, vB, vC))
I("s_lshl3_add_u32 %s, %s, %s" % (sGrp, sH, sJ))
I("s_lshl3_add_u32 %s, %s, %s" % (sA, sGrp, sW)); I("s_lshl_b32 %s, %s, 7" % (sA, sA))
I("s_add_u32 %s, %s, 0x%x" % (sHFp, sA, WS_H0L))
I("s_lshl_b32 %s, %s, 10" % (sSpin, sB)); I("s_add_u32 %s, %s, %d" % (sSpin, sSpin, XI)); I("s_lshl_b32 %s, %s, 6" % (sB, sB))
for r in range(4): I("v_mov_b32 %s, 0x%x" % (V(ACC + r), SENT))
I("s_lshl_b32 %s, %s, 3" % (sL1a, sA)); I("s_add_u32 %s, %s, 0x%x" % (sL1a, sL1a, WS_H2))
lgkm(0)
stamp("karg")
I("s_load_dword %s, s[44:45], 0" % sT)
I("buffer_load_dwordx4 %s, %s, %s offen nt lds" % (vF16, WQ, sUV), tag="wq")
I("s_add_u32 m0, m0, 1056")
I("s_cmp_lt_u32 %s, 2" % sW)
I("buffer_load_dwordx4 %s, %s, %s offen nt lds" % (vF16, WQ, sC), tag="wq")
I("s_cbranch_scc0 L_nox")
I("s_mov_b32 m0, %s" % sSpin)
I("buffer_load_dwordx4 %s, %s, %s offen lds" % (vC, X, sB), tag="wq")
k.label("L_nox")
if CLR == 0:
    I("buffer_store_dwordx4 %s, %s, %s, %s offen sc1" % (V(ACC, 4), vL16, WS, sL1a), tag="wq")
elif CLR == 1:
    I("s_bitcmp1_b32 s2, 3")
    I("s_cbranch_scc1 L_noclr")
    I("buffer_store_dwordx4 %s, %s, %s, %s offen sc1" % (V(ACC, 4), vL16, WS, sL1a), tag="wq")
    I("s_add_u32 %s, %s, 8192" % (sL1a, sL1a))
    I("buffer_store_dwordx4 %s, %s, %s, %s offen sc1" % (V(ACC, 4), vL16, WS, sL1a), tag="wq")
    k.label("L_noclr")
I("s_barrier")
stamp("O1")
I("s_add_u32 %s, %s, 0x%x" % (sH25p, sA, WS_H25))
I("v_mul_u32_u24 %s, 0x%x, %s" % (vA, WS_H0L - WS_H25, vL))
ex(3)
I("buffer_load_dword v38, %s, %s, %s offen sc1" % (vA, WS, sH25p), tag="pt")
ex(-1)
I("s_add_u32 %s, %s, 0x%x" % (sC, sA, WS_H0))
I("s_lshl3_add_u32 %s, s2, %s" % (sB, sW)); I("s_lshl_b32 %s, %s, 9" % (sB, sB)); I("s_add_u32 %s, %s, 0x%x" % (sB, sB, WS_H3))
I("s_cmp_lt_u32 s2, 32"); I("s_cselect_b32 %s, %s, 0x7f000000" % (sB, sB))
I("v_lshlrev_b32 %s, 7, %s" % (vA, vL))
ex(15)
I("buffer_load_dword v39, %s, %s, %s offen sc1" % (vA, WS, sB), tag="pt")
ex(-1)
I("s_mov_b32 s10, 0x%x" % sizes[8]); I("s_mov_b32 s11, 0x20000")
I("s_lshr_b32 %s, s2, 3" % sI)
I("s_lshr_b32 %s, %s, 2" % (sA, sI)); I("s_lshl3_add_u32 %s, %s, %s" % (sTile, sX8, sA))
I("s_and_b32 %s, %s, 3" % (sW4, sW))
I("s_mul_i32 %s, %s, %d" % (sCKm, sW4, 16*1056)); I("s_add_u32 %s, %s, %d" % (sCKm, sCKm, CKV))
I("s_and_b32 %s, %s, 2" % (sA, sI)); I("s_lshl3_add_u32 %s, %s, %s" % (sA, sA, sW4))
I("s_lshl_b32 %s, %s, 12" % (sA, sA)); I("s_lshl_b32 %s, %s, 17" % (sCKo, sTile)); I("s_add_u32 %s, %s, %s" % (sCKo, sCKo, sA))
I("s_bitcmp1_b32 s2, 3")
br("s_cbranch_scc0 L_fetch0")
def clr2():
    I("buffer_store_dwordx4 %s, %s, %s, %s offen sc1" % (V(ACC, 4), vL16, WS, sL1a), tag="wuk")
    I("s_sub_u32 %s, %s, 8192" % (sL1a, sL1a))
    I("buffer_store_dwordx4 %s, %s, %s, %s offen sc1" % (V(ACC, 4), vL16, WS, sL1a), tag="wuk")
if CLR == 2: clr2()
I("s_add_u32 m0, %s, %d" % (sW2112, WUKI))
I("s_sub_u32 %s, %s, 0x80000" % (sA, sUV))
I("buffer_load_dwordx4 %s, %s, %s offen nt lds" % (vF16, WUK, sA), tag="wuk")
I("s_add_u32 m0, m0, 1056"); I("s_add_u32 %s, %s, 8192" % (sA, sA))
I("buffer_load_dwordx4 %s, %s, %s offen nt lds" % (vF16, WUK, sA), tag="wuk")
I("s_add_u32 m0, m0, %d" % (16896 - 1056))
I("buffer_load_dwordx4 %s, %s, %s offen nt lds" % (vF16, WUK, sUV), tag="wuk")
I("s_add_u32 m0, m0, 1056"); I("s_add_u32 %s, %s, 8192" % (sA, sUV))
I("buffer_load_dwordx4 %s, %s, %s offen nt lds" % (vF16, WUK, sA), tag="wuk")
if CLR == 3: clr2()
br("s_branch L_r0")
label("L_fetch0")
I("s_cmp_lt_u32 %s, 4" % sW)
br("s_cbranch_scc1 L_flo")
ckv_rows(0, R0, throttle=False)
br("s_branch L_r0")
label("L_flo")
if CLR == 4:
    I("s_mul_i32 %s, %s, 3072" % (sA, sW)); I("s_add_u32 %s, %s, %s" % (sL1a, sL1a, sA))
    for r in range(4):
        I("buffer_store_dwordx4 %s, %s, %s, %s offen offset:%d sc1" % (V(ACC, 4), vL16, WS, sL1a, 1024*r), tag="clr")
label("L_r0")
for srd, off in ((20, 32), (24, 40), (28, 56), (32, 64), (36, 72), (40, 80)):
    I("s_load_dwordx2 s[%d:%d], s[0:1], %d" % (srd, srd + 1, off))
for srd in (20, 24, 28, 32, 36, 40):
    I("s_mov_b32 s%d, 0x%x" % (srd + 2, sizes[srd])); I("s_mov_b32 s%d, 0x20000" % (srd + 3))
I("s_and_b32 %s, %s, 3" % (sHG, sI))
I("s_lshl3_add_u32 %s, %s, %s" % (sFS, sG, sX8))
setmask(mk8, 0x00ff00ff); setmask(mk2, 0x00030003)
I("s_lshl_b32 %s, %s, 1" % (sA, sJ)); I("s_lshl_b64 %s, %s, %s" % (mkJ, mk2, sA))
I("s_getreg_b32 %s, hwreg(HW_REG_XCC_ID)" % sT2x)
I("s_mov_b32 %s, 0x3f803f80" % sOnes)
ONE = QB + 44
for r in range(4): I("v_mov_b32 %s, %s" % (V(ONE + r), sOnes))
I("v_cmp_lt_u32 %s, 7, %s" % (sHi, vN))
t8, t9, t10, t11, t12, t13, t14 = [V(QB + 32 + i) for i in range(7)]
I("v_lshrrev_b32 %s, 2, %s" % (vA, vL)); I("v_and_b32 %s, 3, %s" % (vB, vL)); I("v_and_b32 %s, 1, %s" % (vC, vA))
I("v_mul_u32_u24 %s, 1056, %s" % (vTr, vA)); I("v_lshl_add_u32 %s, %s, 3, %s" % (vTr, vB, vTr))
I("s_lshl_b32 %s, %s, 5" % (sA, sW)); I("v_add_u32 %s, %s, %s" % (aTrA, sA, vTr))
I("v_add_u32 %s, %d, %s" % (r0, WQI, aTrA))
I("v_lshl_add_u32 %s, %s, 6, %s" % (oPub, r1, vS16))
I("v_lshrrev_b32 %s, 3, %s" % (t8, vL)); I("v_bfe_u32 %s, %s, 3, 1" % (t9, vL)); I("v_lshrrev_b32 %s, 5, %s" % (t11, vL))
I("v_and_b32 %s, 7, %s" % (vL7, vL)); I("v_lshlrev_b32 %s, 4, %s" % (t13, vL7))
I("v_mul_u32_u24 %s, 1056, %s" % (t10, vN)); I("v_add_u32 %s, %s, %s" % (t10, t10, vS16))
I("v_and_b32 %s, 1, %s" % (t12, vS))
I("v_mul_u32_u24 %s, 288, %s" % (aCPw, vC)); I("v_lshl_add_u32 %s, %s, 3, %s" % (aCPw, vB, aCPw)); I("v_lshl_add_u32 %s, %s, 5, %s" % (aCPw, t8, aCPw))
I("s_mul_i32 %s, %s, 576" % (sA, sW)); I("v_add_u32 %s, %s, %s" % (aCPw, sA, aCPw))
I("v_mul_u32_u24 %s, 288, %s" % (aCPr, vN)); I("v_add_u32 %s, %s, %s" % (aCPr, aCPr, vS16))
I("s_and_b32 %s, %s, 1" % (sA, sW)); I("s_lshl_b32 %s, %s, 9" % (sA, sA)); I("s_lshr_b32 %s, %s, 1" % (sB, sW4)); I("s_mul_i32 %s, %s, 16896" % (sB, sB))
I("s_add_u32 %s, %s, %s" % (sA, sA, sB)); I("v_add_u32 %s, %s, %s" % (r2, sA, t10))
I("v_lshl_add_u32 %s, %s, 1, %s" % (r3, vS, t9)); I("v_lshlrev_b32 %s, 4, %s" % (r3, r3)); I("v_lshl_add_u32 %s, %s, 16, %s" % (r3, r1, r3))
I("s_lshl3_add_u32 %s, %s, %s" % (sA, sH, sW)); I("s_lshl_b32 %s, %s, 10" % (sH25g, sA))
I("v_mov_b32 %s, 0" % V(ACC + 8)); I("v_mov_b32 %s, 0" % V(ACC + 10)); I("v_mov_b32 %s, %d" % (V(ACC + 11), 1 if LOCAL else 0))
ex(1)
I("ds_write_b64 %s, %s offset:%d" % (V(ACC + 8), V(ACC + 10, 2), CNT))
ex(-1)
PT = 2
def wait_role(n_after):
    La, Lb = k.newlabel("L_wr"), k.newlabel("L_wr")
    I("s_bitcmp1_b32 s2, 3")
    I("s_cbranch_scc0 %s" % Lb)
    I("s_waitcnt vmcnt(%d)" % (n_after + (6 if CLR in (2, 3) else 4)))
    I("s_branch %s" % La)
    k.label(Lb)
    Lc = k.newlabel("L_wr")
    I("s_cmp_ge_u32 %s, 4" % sW)
    I("s_cbranch_scc1 %s" % Lc)
    I("s_waitcnt vmcnt(%d)" % (n_after + (4 if CLR == 4 else 0)))
    I("s_branch %s" % La)
    k.label(Lc)
    I("s_waitcnt vmcnt(%d)" % (n_after + R0))
    k.label(La)
stamp("preE")
lgkm(0)
stamp("E")
I("s_add_u32 %s, %s, 1" % (sT, sT)); I("s_not_b32 %s, %s" % (sT2, sT))
I("v_mov_b32 %s, %s" % (V(GR), sT)); I("v_mov_b32 %s, %s" % (V(GR + 1), sT2))
I("s_and_b32 %s, %s, 15" % (sT2x, sT2x)); I("s_add_u32 %s, %s, 1" % (sT2x, sT2x)); I("s_xor_b32 %s, %s, %s" % (sT2x, sT2x, sT2)); I("s_mov_b32 %s, %s" % (sTXa, sT))
I("v_mov_b32 %s, %s" % (V(ACC + 12), sT)); I("v_mov_b32 %s, %s" % (V(ACC + 13), sT2x))
wait_role(PT)
stamp("wq")
I("s_barrier")
stamp("B1")
WQF = QB
I("ds_read_b128 %s, %s offset:%d" % (V(XF, 4), vL16, XI))
I("ds_read_b128 %s, %s offset:%d" % (V(XF + 4, 4), vL16, XI + 1024))
for z in range(4):
    I("ds_read_b64_tr_b16 %s, %s offset:%d" % (V(WQF + 2*z, 2), r0, 256*z))
k.lgkm(4)
mfma(ACC + 8, ONE, XF, "0")
mfma(ACC + 8, ONE, XF + 4, ACC + 8)
k.lgkm(2)
mfma(ACC, WQF, XF, "0")
mfma(ACC + 4, WQF, ONE, "0")
lgkm(0)
mfma(ACC, WQF + 4, XF + 4, ACC)
mfma(ACC + 4, WQF + 4, ONE, ACC + 4)
I("s_barrier")
for sh in (8, 4, 2):
    I("v_add_f32_dpp %s, %s, %s row_ror:%d%s" % (V(ACC + 8), V(ACC + 8), V(ACC + 8), sh, DPP))
I("v_mul_f32 %s, 0xbb000000, %s" % (vNM, V(ACC + 8)))
for r in range(4): I("v_fmac_f32 %s, %s, %s" % (V(ACC + r), V(ACC + 4 + r), vNM))
if CLR == 4:
    I("s_lshr_b32 %s, %s, 2" % (sA, sW)); I("s_or_b32 %s, %s, %s" % (sA, sA, sI)); I("s_bitcmp1_b32 %s, 0" % sA)
    I("s_cbranch_scc1 L_clrok")
    I("s_waitcnt vmcnt(0)")
    k.label("L_clrok")
ex(mkJ)
if LOCAL:
    I("v_cvt_pk_bf16_f32 %s, %s, %s" % (V(ACC + 14), V(ACC), V(ACC + 1)))
    I("v_cvt_pk_bf16_f32 %s, %s, %s" % (V(ACC + 15), V(ACC + 2), V(ACC + 3)))
    I("buffer_store_dwordx4 %s, %s, %s, %s offen" % (V(ACC + 12, 4), oPub, WS, sHFp), tag="st")
I("v_cvt_pk_bf16_f32 %s, %s, %s" % (V(GR + 2), V(ACC), V(ACC + 1)))
I("v_cvt_pk_bf16_f32 %s, %s, %s" % (V(GR + 3), V(ACC + 2), V(ACC + 3)))
I("buffer_store_dwordx4 %s, %s, %s, %s offen sc1" % (V(GR, 4), oPub, WS, sC), tag="st")
ex(-1)
stamp("A0pub")
R1 = R0 + knob("R1X", 10)
I("s_bitcmp1_b32 s2, 3")
br("s_cbranch_scc1 L_nof1")
I("s_cmp_lt_u32 %s, 4" % sW)
br("s_cbranch_scc1 L_nof1")
ckv_rows(R0, R1, throttle=False)
label("L_nof1")
a = ACC + 16; b = ACC + 17
I("v_dot2_f32_bf16 %s, %s, %s, 0" % (V(a), V(XF), V(XF)))
for r in range(1, 8): I("v_dot2_f32_bf16 %s, %s, %s, %s" % (V(a), V(XF + r), V(XF + r), V(a)))
I("s_add_u32 %s, %s, 0x%x" % (sB, sH25g, WS_H0L)); I("s_add_u32 %s, %s, 0x%x" % (sC, sH25g, WS_H0)); I("s_add_u32 %s, %s, 0x%x" % (sH25g, sH25g, WS_H25))
for sh in (8, 4, 2):
    I("v_add_f32_dpp %s, %s, %s row_ror:%d%s" % (V(a), V(a), V(a), sh, DPP))
for sw in ("16", "32"):
    I("v_mov_b32 %s, %s" % (V(b), V(a)))
    I("v_permlane%s_swap_b32 %s, %s" % (sw, V(a), V(b)))
    I("v_add_f32 %s, %s, %s" % (V(a), V(a), V(b)))
I("v_mul_f32 %s, 0x3b000000, %s" % (V(a), V(a)))
I("v_fma_f32 %s, -%s, %s, %s" % (V(a), vNM, vNM, V(a)))
I("v_max_f32 %s, 0, %s" % (V(a), V(a)))
I("v_add_f32 %s, 0x3727c5ac, %s" % (V(a), V(a)))
I("v_rsq_f32 %s, %s" % (vRS, V(a)))
SCALE = struct.unpack("<I", struct.pack("<f", math.log2(math.e) / math.sqrt(128.0)))[0]
I("s_lshr_b32 %s, %s, 1" % (sA, sW4))
I("v_mul_f32 %s, 0x%08x, %s" % (vSC, SCALE, vRS))
I("v_readlane_b32 %s, %s, %s" % (sRS, vRS, sA))
I("s_bitcmp1_b32 s2, 3")
br("s_cbranch_scc0 L_pc2")
WUF = FR
def ld_h0(soff): I("buffer_load_dwordx4 %s, %s, %s, %s offen sc1" % (V(ACC + 4, 4), vL16, WS, soff), tag="h0")
def chk(tt):
    I("v_cmp_ne_u64 vcc, %s, %s" % (tt, V(ACC + 4, 2)))
    I("s_cmp_lg_u64 vcc, 0")
if LOCAL: I("s_waitcnt vmcnt(%d)" % knob("LWN", 2))
else: I("s_waitcnt vmcnt(0)")
stamp("W")
ld_h0(sB if LOCAL else sC)
I("s_waitcnt vmcnt(3)")
I("s_barrier")
I("s_cmp_ge_u32 %s, 4" % sW)
I("s_cbranch_scc1 L_nowu")
for ks in range(8):
    I("ds_read_b128 %s, %s offset:%d" % (V(WUF + 4*ks, 4), r2, WUKI + 64*ks))
k.label("L_nowu")
k.wait_vm0()
stamp("h0_1st"); flush(True)
chk(sTX if LOCAL else sTT)
I("s_cbranch_scc0 L_h0_done")
I("s_mov_b32 %s, 0" % sSpin)
k.label("L_h0_retry")
I("s_add_u32 %s, %s, 1" % (sSpin, sSpin))
I("s_cmp_gt_u32 %s, %d" % (sSpin, SPIN_MAX))
I("s_cbranch_scc1 L_END")
if LOCAL:
    ld_h0(sB)
    k.wait_vm0()
    chk(sTX)
    I("s_cbranch_scc0 L_h0_done")
    I("s_cmp_lt_u32 %s, %d" % (sSpin, NL))
    I("s_cbranch_scc1 L_h0_retry")
ld_h0(sC)
k.wait_vm0()
chk(sTT)
I("s_cbranch_scc1 L_h0_retry")
k.label("L_h0_done")
stamp("h0_ok")
I("ds_write_b64 %s, %s offset:%d" % (aCPw, V(ACC + 6, 2), QP))
lgkm(0)
I("s_barrier")
stamp("B2")
I("s_cmp_ge_u32 %s, 4" % sW)
br("s_cbranch_scc1 L_a1_hi")
QPF = FR + 32
for ks in range(4):
    I("ds_read_b128 %s, %s offset:%d" % (V(QPF + 4*ks, 4), aCPr, QP + 64*ks))
I("s_lshl1_add_u32 %s, %s, %s" % (sA, sGrp, sW)); I("s_lshl_b32 %s, %s, 7" % (sA, sA)); I("s_add_u32 %s, %s, 0x%x" % (sA, sA, WS_H1 - 256))
for ks in range(4):
    k.lgkm(3 - ks)
    mfma(ACC + 4, WUF + 4*ks, QPF + 4*ks, "0" if ks == 0 else ACC + 4)
    mfma(ACC + 8, WUF + 16 + 4*ks, QPF + 4*ks, "0" if ks == 0 else ACC + 8)
for r in range(4): I("v_add_f32_dpp %s, %s, %s row_ror:8 row_mask:0xf bank_mask:0x3" % (V(ACC + r), V(ACC + 4 + r), V(ACC + 4 + r)))
for r in range(4): I("v_add_f32_dpp %s, %s, %s row_ror:8 row_mask:0xf bank_mask:0xc" % (V(ACC + r), V(ACC + 8 + r), V(ACC + 8 + r)))
for r in range(4): I("v_add_f32_dpp %s, %s, %s row_shl:4 row_mask:0xf bank_mask:0x5" % (V(ACC + r), V(ACC + r), V(ACC + r)))
for r in range(4): I("v_add_f32_dpp %s, %s, %s quad_perm:[2,3,0,1]%s" % (V(ACC + r), V(ACC + r), V(ACC + r), DPP))
for r in range(4): I("v_mul_f32 %s, %s, %s" % (V(ACC + r), vSC, V(ACC + r)))
I("v_cvt_pk_bf16_f32 %s, %s, %s" % (V(GR + 2), V(ACC), V(ACC + 1)))
I("v_cvt_pk_bf16_f32 %s, %s, %s" % (V(GR + 3), V(ACC + 2), V(ACC + 3)))
ex32(0x03030303)
I("buffer_store_dwordx4 %s, %s, %s, %s offen sc1" % (V(GR, 4), r3, WS, sA), tag="st")
ex(-1)
stamp("A1pub")
br("s_branch L_pc2")
label("L_a1_hi")
ckv_rows(0, R1, throttle=False)
hi_vms = [["ckA"] * R1]
label("L_pc2")
def common_pc():
    I("v_lshlrev_b32 %s, 5, %s" % (oWO, vS)); I("v_lshl_add_u32 %s, %s, 2, %s" % (oWO, t9, oWO)); I("v_lshl_add_u32 %s, %s, 10, %s" % (oWO, oWO, t13))
    I("s_lshl_b32 %s, %s, 11" % (sC, sWD)); I("s_lshl_b32 %s, %s, 7" % (sB, sJ)); I("s_add_u32 %s, %s, %s" % (sC, sC, sB))
    I("s_lshl_b32 %s, %s, 17" % (sA, sH)); I("s_add_u32 %s, %s, %s" % (sA, sA, sC)); I("v_add_u32 %s, %s, %s" % (oWO, sA, oWO))
    I("v_lshlrev_b32 %s, 5, %s" % (t14, t12)); I("v_lshl_add_u32 %s, %s, 2, %s" % (t14, t9, t14)); I("v_add_u32 %s, %s, %s" % (t14, t14, t11))
    I("v_lshl_add_u32 %s, %s, 10, %s" % (oWD, t14, t13))
    I("s_lshl_b32 %s, %s, 16" % (sA, sFS)); I("s_add_u32 %s, %s, %s" % (sA, sA, sC)); I("v_add_u32 %s, %s, %s" % (oWD, sA, oWD))
    I("s_lshl3_add_u32 %s, %s, %s" % (sA, sHG, sW4)); I("s_lshl_b32 %s, %s, 11" % (sA, sA))
    I("s_lshr_b32 %s, %s, 5" % (sB, sTile)); I("s_lshl_b32 %s, %s, 16" % (sB, sB)); I("s_add_u32 %s, %s, %s" % (sA, sA, sB)); I("s_add_u32 %s, %s, 0x%x" % (sA, sA, WS_H1))
    I("v_add_u32 %s, %s, %s" % (oH1, sA, vL16))
    I("s_mul_i32 %s, %s, 544" % (sA, sW4)); I("v_lshl_add_u32 %s, %s, 3, %s" % (aQw, vL, sA))
    I("s_lshl3_add_u32 %s, %s, %s" % (sA, sGrp, sW)); I("s_lshl_b32 %s, %s, 10" % (sA, sA)); I("s_add_u32 %s, %s, 0x%x" % (sA, sA, WS_H2))
    I("v_add_u32 %s, %s, %s" % (oH2, sA, vL16))
    I("v_lshlrev_b32 %s, 6, %s" % (aOWw, t12)); I("v_lshl_add_u32 %s, %s, 3, %s" % (aOWw, vL7, aOWw)); I("v_lshl_add_u32 %s, %s, 2, %s" % (aOWw, t11, aOWw))
    I("s_lshr_b32 %s, %s, 2" % (sA, sW)); I("s_lshl1_add_u32 %s, %s, %s" % (sA, sW4, sA)); I("s_mul_i32 %s, %s, 160" % (sA, sA))
    I("v_add_u32 %s, %s, %s" % (aOWw, sA, aOWw))
    I("v_mul_u32_u24 %s, 160, %s" % (aST2r, vL7)); I("v_add_u32 %s, %s, %s" % (aOWr, aST2r, vS16))
    I("s_mul_i32 %s, %s, %d" % (sL1m, sW4, 2112))
common_pc()
I("s_cmp_ge_u32 %s, 4" % sW)
br("s_cbranch_scc1 L_pc_hi")
I("s_mul_i32 %s, %s, %d" % (sL1m, sW4, 2112))
I("s_lshl_b32 %s, %s, 7" % (sB, sW))
I("s_lshl3_add_u32 %s, %s, %s" % (sA, sFS, sJ)); I("s_lshl_b32 %s, %s, 10" % (sA, sA)); I("s_add_u32 %s, %s, %s" % (sA, sA, sB)); I("s_add_u32 %s, %s, 0x%x" % (sHFp, sA, WS_HF))
I("s_lshl2_add_u32 %s, %s, %s" % (sA, sJ, sW)); I("s_lshl_b32 %s, %s, 12" % (sA, sA)); I("s_lshl_b32 %s, %s, 7" % (sB, sH))
I("s_add_u32 %s, %s, %s" % (sA, sA, sB)); I("s_add_u32 %s, %s, 0x%x" % (sH3p, sA, WS_H3))
I("v_mul_u32_u24 %s, 2752, %s" % (oGU, t14)); I("v_add_u32 %s, %s, %s" % (oGU, oGU, t13))
I("s_lshl3_add_u32 %s, %s, %s" % (sA, sJ, sW4)); I("s_mul_i32 %s, %s, %d" % (sL1a, sA, 8*2752)); I("s_lshl_b32 %s, %s, 7" % (sB, sFS)); I("s_add_u32 %s, %s, %s" % (sL1a, sL1a, sB))
I("s_cmp_lt_u32 %s, 22" % sFS); I("s_cselect_b32 %s, %s, 0x7f000000" % (sL1a, sL1a))
I("s_mul_i32 %s, %s, %d" % (sA, sW, 16*1056)); I("s_add_u32 %s, %s, %d" % (sA, sA, CKV))
I("v_add_u32 %s, %s, %s" % (aQKa, sA, t10)); I("v_add_u32 %s, %d, %s" % (aQKb, 64*1056, aQKa))
I("v_mul_u32_u24 %s, 544, %s" % (aQr, vN)); I("v_add_u32 %s, %s, %s" % (aQr, aQr, vS16))
I("v_mov_b32 %s, %s" % (aMXr, t13))
I("s_lshl_b32 %s, %s, 2" % (sA, sW)); I("v_add_u32 %s, %s, %s" % (aMXw, sA, aMXr))
I("v_mul_u32_u24 %s, 288, %s" % (aPw, vL7)); I("v_add_u32 %s, %s, %s" % (aPw, aPw, vS16)); I("v_lshl_add_u32 %s, %s, 3, %s" % (aPw, t9, aPw))
I("s_lshl_b32 %s, %s, 6" % (sA, sW)); I("v_add_u32 %s, %s, %s" % (aPw, sA, aPw))
I("v_mul_u32_u24 %s, 1056, %s" % (aTrF, t8)); I("v_lshl_add_u32 %s, %s, 9, %s" % (aTrF, vC, aTrF)); I("v_lshl_add_u32 %s, %s, 3, %s" % (aTrF, vB, aTrF))
I("s_lshl_b32 %s, %s, 5" % (sA, sW4)); I("s_add_u32 %s, %s, %d" % (sA, sA, GI)); I("v_add_u32 %s, %s, %s" % (aTrF, sA, aTrF))
I("v_lshl_add_u32 %s, %s, 2, %s" % (oOut, vB, vS)); I("v_lshl_add_u32 %s, %s, 9, %s" % (oOut, vC, oOut))
I("s_lshl_b32 %s, s2, 4" % sA); I("v_add_lshl_u32 %s, %s, %s, 1" % (oOut, oOut, sA))
I("v_mul_u32_u24 %s, 160, %s" % (aHBr, vN)); I("v_add_u32 %s, %s, %s" % (aHBr, aHBr, vS16))
if PF:
    flush(True)
    I("s_mov_b64 exec, 0")
    for w in range(3):
        I("s_cmp_eq_u32 %s, %d" % (sW, w)); I("s_cbranch_scc1 L_stub_%d" % w)
    I("s_branch L_stub_3")
    k.label("L_back")
    ex(-1)
    stamp("back")
if LOCAL:
    I("s_cmp_lg_u32 %s, 0" % sW)
    br("s_cbranch_scc1 L_pc_end")
    I("v_lshlrev_b32 %s, 10, %s" % (V(ACC + 20), vL))
    I("s_add_u32 %s, %s, 0x%x" % (sB, sH25g, WS_H0L - WS_H25))
    I("s_mov_b32 %s, 0" % sSpin)
    I("s_mov_b64 exec, 0xff")
    k.label("L_loc")
    I("buffer_load_dwordx2 %s, %s, %s, %s offen sc1" % (V(ACC + 22, 2), V(ACC + 20), WS, sB), tag="loc")
    I("s_add_u32 %s, %s, 1" % (sSpin, sSpin))
    k.wait_vm0()
    I("v_cmp_ne_u64 vcc, %s, %s" % (sTX, V(ACC + 22, 2)))
    I("s_cbranch_vccz L_locok")
    I("s_cmp_lt_u32 %s, 3" % sSpin)
    I("s_cbranch_scc1 L_loc")
    I("v_mov_b32 %s, 0" % V(ACC + 20))
    I("ds_write_b32 %s, %s offset:%d" % (V(ACC + 20), V(ACC + 20), LOC))
    k.label("L_locok")
    ex(-1)
br("s_branch L_pc_end")
label("L_pc_hi")
k.vms = [list(l) for l in hi_vms]
I("s_lshl_b32 %s, %s, 8" % (sA, sW4)); I("s_add_u32 %s, %s, %d" % (sA, sA, CKV))
I("v_add_u32 %s, %s, %s" % (aPVa, sA, vTr)); I("v_add_u32 %s, %d, %s" % (aPVb, 64*1056, aPVa))
I("v_mul_u32_u24 %s, 288, %s" % (aPr, vL7)); I("v_add_u32 %s, %s, %s" % (aPr, aPr, vS16))
I("v_mov_b32 %s, %s" % (aMXr_h, t13))
I("v_lshl_add_u32 %s, %s, 6, %s" % (oH2p, t9, vS16)); I("v_lshl_add_u32 %s, %s, 16, %s" % (oH2p, vL7, oH2p))
I("s_lshl_b32 %s, %s, 19" % (sA, sHG)); I("s_lshl_b32 %s, %s, 14" % (sB, sW4)); I("s_add_u32 %s, %s, %s" % (sA, sA, sB))
I("s_lshl_b32 %s, %s, 7" % (sB, sTile)); I("s_add_u32 %s, %s, %s" % (sA, sA, sB)); I("s_add_u32 %s, %s, 0x%x" % (sA, sA, WS_H2))
I("v_add_u32 %s, %s, %s" % (oH2p, sA, oH2p))
I("s_lshl_b32 %s, %s, 16" % (sA, sW4)); I("s_add_u32 %s, %s, %s" % (sUV, sD, sA))
I("v_lshlrev_b32 %s, 10, %s" % (oHF, vL7)); I("v_bfe_u32 %s, %s, 3, 2" % (t12, vL)); I("v_lshl_add_u32 %s, %s, 4, %s" % (oHF, t12, oHF))
I("v_lshl_add_u32 %s, %s, 7, %s" % (oHF, t11, oHF))
I("s_lshl_b32 %s, %s, 13" % (sC, sFS)); I("s_lshr_b32 %s, %s, 1" % (sA, sW4)); I("s_lshl_b32 %s, %s, 6" % (sB, sA)); I("s_add_u32 %s, %s, %s" % (sC, sC, sB))
I("s_and_b32 %s, %s, 1" % (sB, sW)); I("s_lshl_b32 %s, %s, 8" % (sSpin, sB)); I("s_add_u32 %s, %s, %s" % (sC, sC, sSpin)); I("s_add_u32 %s, %s, 0x%x" % (sC, sC, WS_HF))
I("v_add_u32 %s, %s, %s" % (oHF, sC, oHF))
I("s_mul_i32 %s, %s, 160" % (sC, sA)); I("s_lshl_b32 %s, %s, 6" % (sB, sB)); I("s_add_u32 %s, %s, %s" % (sC, sC, sB))
I("v_lshl_add_u32 %s, %s, 3, %s" % (aHBw, t8, sC))
I("v_mov_b32 %s, %s" % (vSC, sRS))
I("v_mov_b32 %s, 0" % r7); I("v_mov_b32 %s, 0" % r8)
I("v_mov_b32 %s, 0" % oGU)
for r in range(4): I("v_mov_b32 %s, %s" % (V(XF + r), sOnes))
ZH = knob("ZH", 24)
stamp("hipc")
ckv_rows(R1, 16)
stamp("z16")
ckv_rows(16, ZH)
stamp("pre1")
I("s_movk_i32 %s, 0x2000" % sC)
def ld_h1(tag):
    for u in range(4):
        I("buffer_load_dwordx4 %s, %s, %s, %s offen offset:%d sc1" % (V(ACC + 4*u, 4), oH1, WS, sC if u >= 2 else "0", 1024*(u & 1)), tag=tag)
I("s_bitcmp1_b32 s2, 3")
br("s_cbranch_scc0 L_noh1")
ld_h1("h1")
label("L_noh1")
ckv_rows(ZH, 32)
stamp("ckiss")
k.wait_vm("ckA")
hi_vms = [list(l) for l in k.vms]
label("L_pc_end")
I("s_lshl_b32 %s, %s, 12" % (sA, sW)); I("s_lshl4_add_u32 %s, %s, %s" % (sA, sH, sA)); I("s_add_u32 %s, %s, 0x%x" % (sA, sA, WS_HS))
I("v_lshl_add_u32 %s, %s, 9, %s" % (oHS, t8, sA))
I("v_mov_b32 %s, 0" % vA)
lgkm(0)
I("s_barrier")
stamp("Ha")
I("ds_read_b32 %s, %s offset:%d" % (vB, vA, LOC))
def qk_reads(half):
    for kk in range(16):
        I("ds_read_b128 %s, %s offset:%d" % (V(FR + 64*half + 4*kk, 4), aQKb if half else aQKa, 64*kk))
def pv_reads(q):
    for t in range(8):
        for kp in range(4):
            I("ds_read_b64_tr_b16 %s, %s offset:%d" % (V(FR + 16*t + 4*kp + 2*q, 2), aPVb if q else aPVa, 16*kp*1056 + 32*t))
def gu_loads():
    I("s_add_u32 m0, %s, %d" % (sL1m, GI))
    I("s_add_u32 %s, %s, %d" % (sA, sL1a, 2*2752))
    I("buffer_load_dwordx4 %s, %s, %s offen nt lds" % (oGU, GA, sL1a), tag="l1")
    I("s_add_u32 m0, m0, 1056")
    I("buffer_load_dwordx4 %s, %s, %s offen nt lds" % (oGU, GA, sA), tag="l1")
    I("s_add_u32 m0, %s, %d" % (sL1m, UI))
    I("buffer_load_dwordx4 %s, %s, %s offen nt lds" % (oGU, UP, sL1a), tag="l1")
    I("s_add_u32 m0, m0, 1056")
    I("buffer_load_dwordx4 %s, %s, %s offen nt lds" % (oGU, UP, sA), tag="l1")
def uv_loads():
    I("s_lshl1_add_u32 m0, %s, %d" % (sL1m, WUVI))
    for r in range(4):
        I("buffer_load_dwordx4 %s, %s, %s offen nt lds" % (vF16, WUV, sUV), tag="l1")
        if r < 3: I("s_add_u32 m0, m0, 1056"); I("s_add_u32 %s, %s, 8192" % (sUV, sUV))
def l2_loads():
    I("s_add_u32 m0, %s, %d" % (sW2112, WOI))
    I("buffer_load_dwordx4 %s, %s, 0 offen nt lds" % (oWO, WO), tag="l2")
    I("s_add_u32 m0, m0, 32")
    I("s_lshr_b32 %s, %s, 1" % (sB, sW2112))
    I("buffer_load_dwordx4 %s, %s, 0 offen offset:1024 nt lds" % (oWO, WO), tag="l2")
    I("s_add_u32 m0, %s, %d" % (sB, WDI))
    I("buffer_load_dwordx4 %s, %s, 0 offen nt lds" % (oWD, DN), tag="l2")
I("s_cmp_ge_u32 %s, 4" % sW)
br("s_cbranch_scc1 L_B_hi")
k.vms = [[]]
if PRIO: I("s_setprio 2")
D1a, D2a, D1b, D2b = ACC, ACC + 4, ACC + 8, ACC + 12
qk_reads(0)
if PF1:
    I("s_bitcmp1_b32 s2, 3")
    br("s_cbranch_scc1 L_nopf1")
    I("s_mov_b32 m0, %d" % SCR)
    I("v_lshlrev_b32 %s, 4, %s" % (vA, vN)); I("v_lshl_add_u32 %s, %s, 13, %s" % (vA, vS, vA))
    I("s_lshl_b32 %s, %s, 15" % (sA, sW)); I("s_add_u32 %s, %s, %s" % (sA, sA, sD))
    for r in range(PF1):
        I("buffer_load_dwordx4 %s, %s, %s offen nt lds" % (vA, WUV, sA), tag="pf")
        if r < PF1 - 1: I("s_add_u32 %s, %s, 0x20000" % (sA, sA))
    if PF2:
        I("v_lshlrev_b32 %s, 4, %s" % (vA, vN)); I("v_lshl_add_u32 %s, %s, 10, %s" % (vA, vS, vA))
        I("s_lshl_b32 %s, %s, 17" % (sA, sH)); I("s_lshl_b32 %s, %s, 7" % (sB, sJ)); I("s_add_u32 %s, %s, %s" % (sA, sA, sB)); I("s_lshl_b32 %s, %s, 12" % (sB, sW)); I("s_add_u32 %s, %s, %s" % (sA, sA, sB))
        for r in range(PF2):
            I("buffer_load_dwordx4 %s, %s, %s offen nt lds" % (vA, WO, sA), tag="pf")
            if r < PF2 - 1: I("s_add_u32 %s, %s, 0x4000" % (sA, sA))
    label("L_nopf1")
lgkm(0)
I("v_readfirstlane_b32 %s, %s" % (sLoc, vB))
I("s_barrier")
stamp("B3")
for ks in range(8):
    I("ds_read_b128 %s, %s offset:%d" % (V(QB + 4*ks, 4), aQr, Q_ + 64*ks))
border = []
for ks in range(8): border += [ks, 8 + ks]
def rdb(i): I("ds_read_b128 %s, %s offset:%d" % (V(FR + 64 + 4*border[i], 4), aQKb, 64*border[i]))
for i in range(6): rdb(i)
gu_loads()
I("buffer_load_ushort %s, %s, %s, 0 offen" % (vX, oOut, X), tag="l1")
nb = 6
for ks in range(8):
    k.lgkm(7 - ks + nb)
    mfma(D1a, FR + 4*ks, QB + 4*ks, "0" if ks == 0 else D1a)
    mfma(D2a, FR + 32 + 4*ks, QB + 4*ks, "0" if ks == 0 else D2a)
    if nb < 16 and 7 - ks + nb < 14: rdb(nb); nb += 1
    if nb < 16 and ks >= 5: rdb(nb); nb += 1
while nb < 16: rdb(nb); nb += 1
for ks in range(8):
    k.lgkm(14 - 2*ks)
    mfma(D1b, FR + 64 + 4*ks, QB + 4*ks, "0" if ks == 0 else D1b)
    mfma(D2b, FR + 96 + 4*ks, QB + 4*ks, "0" if ks == 0 else D2b)
Sx = ACC + 16; mx, mt = ACC + 24, ACC + 25
for r in range(4): I("v_add_f32_dpp %s, %s, %s row_ror:8 row_mask:0xf bank_mask:0x3" % (V(Sx + r), V(D2a + r), V(D1a + r)))
for r in range(4): I("v_add_f32_dpp %s, %s, %s row_ror:8 row_mask:0xf bank_mask:0xc" % (V(Sx + r), V(D1b + r), V(D2b + r)))
I("v_max3_f32 %s, %s, %s, %s" % (V(mx), V(Sx), V(Sx + 1), V(Sx + 2)))
I("v_max_f32 %s, %s, %s" % (V(mx), V(mx), V(Sx + 3)))
I("v_max_f32_dpp %s, %s, %s row_ror:8%s" % (V(mx), V(mx), V(mx), DPP))
for sw in ("16", "32"):
    I("v_mov_b32 %s, %s" % (V(mt), V(mx)))
    I("v_permlane%s_swap_b32 %s, %s" % (sw, V(mx), V(mt)))
    I("v_max_f32 %s, %s, %s" % (V(mx), V(mx), V(mt)))
I("s_mov_b64 exec, 0xff")
I("ds_write_b32 %s, %s offset:%d" % (aMXw, V(mx), MX))
ex(-1)
lgkm(0)
I("s_barrier")
stamp("B4a")
I("ds_read_b128 %s, %s offset:%d" % (V(ACC, 4), aMXr, MX))
lgkm(0)
I("v_max3_f32 %s, %s, %s, %s" % (V(mx), V(ACC), V(ACC + 1), V(ACC + 2)))
I("v_max_f32 %s, %s, %s" % (V(mx), V(mx), V(ACC + 3)))
for r in range(4): I("v_sub_f32 %s, %s, %s" % (V(Sx + r), V(Sx + r), V(mx)))
for r in range(4): I("v_exp_f32 %s, %s" % (V(Sx + r), V(Sx + r)))
I("v_cvt_pk_bf16_f32 %s, %s, %s" % (V(ACC), V(Sx), V(Sx + 1)))
I("v_cvt_pk_bf16_f32 %s, %s, %s" % (V(ACC + 1), V(Sx + 2), V(Sx + 3)))
I("ds_write_b64 %s, %s offset:%d" % (aPw, V(ACC, 2), P_))
lgkm(0)
I("s_barrier")
stamp("B4b")
if PRIO: I("s_setprio 0")
HBF = QB
GUF = QB + 8; UVF = QB + 16; H = QB + 24; HF_ = QB + 32; OF = QB + 40
Z = ACC
for r in range(8): I("v_mov_b32 %s, 0" % V(HBF + r))
I("s_cmp_ge_u32 %s, 22" % sFS)
br("s_cbranch_scc1 L_B_end")
I("v_mov_b32 %s, 0" % vA); I("v_mov_b32 %s, 1" % vB)
k.wait_vm("l1")
ex(1)
I("ds_add_u32 %s, %s offset:%d" % (vA, vB, CNT))
ex(-1)
I("s_mov_b32 %s, 0" % sSpin)
k.label("L_cw")
I("s_sleep 1")
I("ds_read_b32 %s, %s offset:%d" % (vB, vA, CNT))
I("s_add_u32 %s, %s, 1" % (sSpin, sSpin))
I("s_cmp_gt_u32 %s, %d" % (sSpin, SPIN_MAX))
I("s_cbranch_scc1 L_END")
lgkm(0)
I("v_cmp_ne_u32 vcc, 4, %s" % vB)
I("s_cbranch_vccnz L_cw")
for z in range(4): I("ds_read_b64_tr_b16 %s, %s offset:%d" % (V(GUF + 2*z, 2), aTrF, 128*z))
for z in range(4): I("ds_read_b64_tr_b16 %s, %s offset:%d" % (V(UVF + 2*z, 2), aTrF, UI - GI + 128*z))
I("v_mov_b32 %s, %s" % (V(ACC + 8), sT)); I("v_mov_b32 %s, %s" % (V(ACC + 9), sT2))
k.lgkm(4)
mfma(ACC, GUF, XF, "0"); mfma(ACC + 12, GUF, ONE, "0")
mfma(ACC, GUF + 4, XF + 4, ACC); mfma(ACC + 12, GUF + 4, ONE, ACC + 12)
lgkm(0)
mfma(ACC + 4, UVF, XF, "0"); mfma(ACC + 16, UVF, ONE, "0")
mfma(ACC + 4, UVF + 4, XF + 4, ACC + 4); mfma(ACC + 16, UVF + 4, ONE, ACC + 16)
for r in range(8): I("v_fmac_f32 %s, %s, %s" % (V(ACC + r), V(ACC + 12 + r), vNM))
I("v_cvt_pk_bf16_f32 %s, %s, %s" % (V(GR + 2), V(ACC), V(ACC + 1)))
I("v_cvt_pk_bf16_f32 %s, %s, %s" % (V(GR + 3), V(ACC + 2), V(ACC + 3)))
I("v_cvt_pk_bf16_f32 %s, %s, %s" % (V(ACC + 10), V(ACC + 4), V(ACC + 5)))
I("v_cvt_pk_bf16_f32 %s, %s, %s" % (V(ACC + 11), V(ACC + 6), V(ACC + 7)))
ex(mkJ)
lstore(["buffer_store_dwordx4 %s, %s, %s, %s offen" % (V(GR, 4), oPub, WS, sHFp), "buffer_store_dwordx4 %s, %s, %s, %s offen offset:512" % (V(ACC + 8, 4), oPub, WS, sHFp)])
ex(-1)
stamp("F1pub")
br("s_branch L_B_end")
label("L_B_hi")
k.vms = [list(l) for l in hi_vms]
if PRIO: I("s_setprio 1")
UV_AT = knob("UV_AT", 0)
pv_reads(0)
I("s_bitcmp1_b32 s2, 3")
br("s_cbranch_scc1 L_h1iss")
ld_h1("h1")
label("L_h1iss")
gather("h1", ld_h1, check64([ACC, ACC + 4, ACC + 8, ACC + 12]), issued=True)
for u in range(4):
    I("ds_write_b64 %s, %s offset:%d" % (aQw, V(ACC + 4*u + 2, 2), Q_ + (8*(u & 1) + 4*(u >> 1))*544))
k.wait_vm("ckB", lgkm=0); flush()
I("v_readfirstlane_b32 %s, %s" % (sLoc, vB))
I("s_barrier")
if UV_AT == 0: uv_loads()
pv_reads(1)
O = QB; PF_ = QB + 32
G = [ACC, ACC + 4]; GS = ACC + 8
I("v_mov_b32 %s, %s" % (V(GS + 2), sT)); I("v_mov_b32 %s, %s" % (V(GS + 3), sT2))
I("s_movk_i32 %s, 0x2000" % sA)
I("s_lshl2_add_u32 %s, %s, %s" % (sB, sTile, sHG)); I("s_lshl_b32 %s, %s, 7" % (sB, sB)); I("s_add_u32 %s, %s, 0x%x" % (sB, sB, WS_HS))
I("s_cmp_eq_u32 %s, 4" % sW); I("s_cselect_b32 %s, %s, 0x7f000000" % (sB, sB))
I("s_barrier")
I("ds_read_b128 %s, %s offset:%d" % (V(Sx, 4), aMXr_h, MX))
lgkm(0)
I("v_max3_f32 %s, %s, %s, %s" % (V(GS), V(Sx), V(Sx + 1), V(Sx + 2)))
I("v_max_f32 %s, %s, %s" % (V(GS), V(GS), V(Sx + 3)))
I("s_barrier")
for kp in range(4):
    I("ds_read_b128 %s, %s offset:%d" % (V(PF_ + 4*kp, 4), aPr, P_ + 64*kp))
def epi(p):
    ops = []
    for r in range(4): ops.append("v_cndmask_b32 %s, %s, %s, %s" % (V(Sx + r), V(O + 8*p + r), V(O + 8*p + 4 + r), sHi))
    ops.append("v_cvt_pk_bf16_f32 %s, %s, %s" % (V(G[p >> 1] + 2*(p & 1)), V(Sx), V(Sx + 1)))
    ops.append("v_cvt_pk_bf16_f32 %s, %s, %s" % (V(G[p >> 1] + 2*(p & 1) + 1), V(Sx + 2), V(Sx + 3)))
    if p & 1: ops.append(("buffer_store_dwordx4 %s, %s, %s, %s offen sc1" % (V(G[p >> 1], 4), oH2p, WS, sA if p >= 2 else "0"), "st2"))
    return ops
LS = ACC + 20
fill = []
def emit_fill(n):
    for _ in range(n):
        if not fill: return
        o = fill.pop(0)
        if isinstance(o, tuple): I(o[0], tag=o[1])
        else: I(o)
for p in range(4):
    for kp in range(4):
        if p == 0: k.lgkm(3 - kp)
        for e in range(2):
            t = 2*p + e
            mfma(O + 4*t, FR + 16*t + 4*kp, PF_ + 4*kp, "0" if kp == 0 else O + 4*t)
            if p == 0 and e == 1: mfma(LS, XF, PF_ + 4*kp, "0" if kp == 0 else LS)
            if p > 0 and kp == 2 and e == 1:
                assert not fill
                fill[:0] = epi(p - 1)
            emit_fill(2)
    if p == 1:
        emit_fill(100)
        I("v_mov_b32 %s, %s" % (V(GS + 1), V(LS)))
        I("s_mov_b64 exec, 0xff")
        I("buffer_store_dwordx4 %s, %s, %s, %s offen sc1" % (V(GS, 4), vL16, WS, sB), tag="st2")
        ex(-1)
emit_fill(100)
for o in epi(3): fill.append(o)
emit_fill(100)
stamp("Bpub")
if PRIO: I("s_setprio 0")
if UV_AT == 1: uv_loads()
k.wait_vm("st2")
stamp("st2ack")
label("L_B_end")
I("s_barrier")
stamp("B5")
I("s_mov_b32 %s, 0x%x" % (sC, SENT))
def ld_h2(tag):
    I("buffer_load_dwordx4 %s, %s, %s, 0 offen sc1" % (V(H, 4), oH2, WS), tag=tag)
    I("buffer_load_dwordx4 %s, %s, %s, 0 offen sc1" % (V(H + 4, 4), oHS, WS), tag=tag)
def chk_h2():
    I("v_cmp_eq_u32 vcc, %s, %s" % (sC, V(H + 3)))
    I("v_cmp_ne_u64 %s, %s, %s" % (sM, sTT, V(H + 6, 2)))
    I("s_or_b64 vcc, vcc, %s" % sM)
def uv_reads():
    for z in range(4): I("ds_read_b64_tr_b16 %s, %s offset:%d" % (V(UVF + 2*z, 2), aTrA, WUVI + 256*z))
def after_h2():
    if UV_AT == 0: uv_reads()
    if L2_AT == 0:
        I("s_barrier")
        l2_loads()
gather("h2", ld_h2, chk_h2, after_first=after_h2)
mw, wt, tt = ACC + 8, ACC + 9, ACC + 10
I("v_max_f32_dpp %s, %s, %s row_ror:8%s" % (V(mw), V(H + 4), V(H + 4), DPP))
for u in range(2):
    I("v_lshlrev_b32 %s, 16, %s" % (V(Z + 4*u), V(H + 2*u)))
    I("v_and_b32 %s, 0xffff0000, %s" % (V(Z + 4*u + 1), V(H + 2*u)))
for n_, sw in enumerate(("16", "32")):
    I("v_mov_b32 %s, %s" % (V(tt), V(mw)))
    I("v_lshlrev_b32 %s, 16, %s" % (V(Z + 4*n_ + 2), V(H + 2*n_ + 1)))
    I("v_and_b32 %s, 0xffff0000, %s" % (V(Z + 4*n_ + 3), V(H + 2*n_ + 1)))
    I("v_permlane%s_swap_b32 %s, %s" % (sw, V(mw), V(tt)))
    I("v_max_f32 %s, %s, %s" % (V(mw), V(mw), V(tt)))
I("v_sub_f32 %s, %s, %s" % (V(wt), V(H + 4), V(mw)))
I("v_exp_f32 %s, %s" % (V(wt), V(wt)))
for r in range(8): I("v_mul_f32 %s, %s, %s" % (V(Z + r), V(Z + r), V(wt)))
lw = mw + 1
I("v_mul_f32 %s, %s, %s" % (V(lw), V(H + 5), V(wt)))
for r in range(4): I("v_permlane16_swap_b32 %s, %s" % (V(Z + r), V(Z + 4 + r)))
for r in range(4): I("v_add_f32 %s, %s, %s" % (V(Z + r), V(Z + r), V(Z + 4 + r)))
I("v_add_f32_dpp %s, %s, %s row_ror:8%s" % (V(lw), V(lw), V(lw), DPP))
for r in range(2): I("v_permlane32_swap_b32 %s, %s" % (V(Z + r), V(Z + 2 + r)))
I("v_mov_b32 %s, %s" % (V(tt), V(lw)))
for r in range(2): I("v_add_f32 %s, %s, %s" % (V(Z + r), V(Z + r), V(Z + 2 + r)))
I("v_permlane16_swap_b32 %s, %s" % (V(lw), V(tt)))
for r in range(2): I("v_add_f32_dpp %s, %s, %s row_ror:8%s" % (V(Z + r), V(Z + r), V(Z + r), DPP))
I("v_add_f32 %s, %s, %s" % (V(lw), V(lw), V(tt)))
I("v_cvt_pk_bf16_f32 %s, %s, %s" % (V(Z), V(Z), V(Z + 1)))
I("v_mov_b32 %s, %s" % (V(tt), V(lw)))
ex(mk8)
I("ds_write_b32 %s, %s offset:%d" % (aOWw, V(Z), OW))
ex(-1)
I("v_permlane32_swap_b32 %s, %s" % (V(lw), V(tt)))
I("v_add_f32 %s, %s, %s" % (V(lw), V(lw), V(tt)))
ex(1)
I("ds_write_b64 %s, %s offset:%d" % (aOWw, V(mw, 2), OW + 128))
ex(-1)
lgkm(0)
I("s_barrier")
stamp("B6")
I("ds_read_b64 %s, %s offset:%d" % (V(mw, 2), aST2r, OW + 128))
I("ds_read_b128 %s, %s offset:%d" % (V(OF, 4), aOWr, OW))
I("ds_read_b128 %s, %s offset:%d" % (V(OF + 4, 4), aOWr, OW + 64))
if UV_AT == 1: uv_reads()
if L2_AT == 1: l2_loads()
k.lgkm(6 if UV_AT == 1 else 2)
mb_ = ACC + 11; e_ = ACC + 12
I("v_max_f32_dpp %s, %s, %s row_ror:4%s" % (V(mb_), V(mw), V(mw), DPP))
I("v_max_f32_dpp %s, %s, %s row_ror:2%s" % (V(mb_), V(mb_), V(mb_), DPP))
lgkm(0)
mfma(ACC, UVF, OF, "0")
mfma(ACC, UVF + 4, OF + 4, ACC)
I("v_sub_f32 %s, %s, %s" % (V(e_), V(mw), V(mb_)))
I("v_exp_f32 %s, %s" % (V(e_), V(e_)))
I("v_mul_f32 %s, %s, %s" % (V(lw), V(lw), V(e_)))
I("v_add_f32_dpp %s, %s, %s row_ror:4%s" % (V(lw), V(lw), V(lw), DPP))
I("v_add_f32_dpp %s, %s, %s row_ror:2%s" % (V(lw), V(lw), V(lw), DPP))
I("v_rcp_f32 %s, %s" % (V(lw), V(lw)))
I("v_mul_f32 %s, %s, %s" % (V(e_), V(e_), V(lw)))
for r in range(4): I("v_mul_f32 %s, %s, %s" % (V(ACC + r), V(ACC + r), V(e_)))
red_j((4, 2))
I("v_cvt_pk_bf16_f32 %s, %s, %s" % (V(GR + 2), V(ACC), V(ACC + 1)))
I("v_cvt_pk_bf16_f32 %s, %s, %s" % (V(GR + 3), V(ACC + 2), V(ACC + 3)))
ex(mk2)
lstore(["buffer_store_dwordx4 %s, %s, %s, %s offen" % (V(GR, 4), oPub, WS, sH25p)])
ex(-1)
stamp("Cpub")
I("s_cmp_ge_u32 %s, 4" % sW)
br("s_cbranch_scc1 L_f2")
I("s_add_u32 %s, %s, 4096" % (sC, sH25g))
k.wait_vm0()
def ld_h25(tag):
    I("buffer_load_dwordx4 %s, %s, %s, %s offen sc1" % (V(H, 4), vL16, WS, sH25g), tag=tag)
    I("buffer_load_dwordx4 %s, %s, %s, %s offen sc1" % (V(H + 4, 4), vL16, WS, sC), tag=tag)
WOF = FR; WDF = FR + 16; CPF = FR + 24
def after_h25():
    I("s_barrier")
    for z in range(8): I("ds_read_b64_tr_b16 %s, %s offset:%d" % (V(WOF + 2*z, 2), aTrA, WOI + 128*z))
    for z in range(4): I("ds_read_b64_tr_b16 %s, %s offset:%d" % (V(WDF + 2*z, 2), aTrF, WDI - GI + 128*z))
gather("h25", ld_h25, check64([H, H + 4]), after_first=after_h25)
I("ds_write_b64 %s, %s offset:%d" % (aCPw, V(H + 2, 2), CP))
I("ds_write_b64 %s, %s offset:%d" % (aCPw, V(H + 6, 2), CP + 4*576))
lgkm(0)
I("s_barrier")
stamp("B7")
for ks in range(4):
    I("ds_read_b128 %s, %s offset:%d" % (V(CPF + 4*ks, 4), aCPr, CP + 64*ks))
I("s_cmp_ge_u32 %s, 22" % sFS)
br("s_cbranch_scc1 L_d_nof")
ex(mk2)
I("ds_read_b128 %s, %s offset:%d" % (V(HBF, 4), aHBr, HB))
I("ds_read_b128 %s, %s offset:%d" % (V(HBF + 4, 4), aHBr, HB + 64))
ex(-1)
label("L_d_nof")
lgkm(0)
for ks in range(4): mfma(ACC, WOF + 4*ks, CPF + 4*ks, "0" if ks == 0 else ACC)
for ks in range(2): mfma(ACC, WDF + 4*ks, HBF + 4*ks, ACC)
red_j((8, 4, 2))
publish(sH3p)
stamp("Dpub")
br("s_branch L_fin")
label("L_f2")
def ld_hf(tag):
    for u in range(2):
        I("buffer_load_dwordx4 %s, %s, %s, 0 offen offset:%d sc1" % (V(HF_ + 4*u, 4), oHF, WS, 512*u), tag=tag)
ld_hf("hf")
k.wait_vm("l2")
I("s_barrier")
I("s_cmp_ge_u32 %s, 22" % sFS)
br("s_cbranch_scc1 L_b7")
gather("hf", ld_hf, check64([HF_, HF_ + 4]), issued=True)
for u in range(2):
    for p in range(2):
        I("v_lshlrev_b32 %s, 16, %s" % (V(Z + 4*u + 2*p), V(HF_ + 4*u + 2 + p)))
        I("v_and_b32 %s, 0xffff0000, %s" % (V(Z + 4*u + 2*p + 1), V(HF_ + 4*u + 2 + p)))
for ctl in ("quad_perm:[1,0,3,2]", "quad_perm:[2,3,0,1]", "row_half_mirror"):
    for r in range(8): I("v_add_f32_dpp %s, %s, %s %s%s" % (V(Z + r), V(Z + r), V(Z + r), ctl, DPP))
I("v_mul_f32 %s, 0xbfb8aa3b, %s" % (V(Z + 8), vSC))
for r in range(4): I("v_mul_f32 %s, %s, %s" % (V(Z + r), V(Z + 8), V(Z + r)))
for r in range(4): I("v_exp_f32 %s, %s" % (V(Z + r), V(Z + r)))
for r in range(4): I("v_mul_f32 %s, %s, %s" % (V(Z + 4 + r), vSC, V(Z + 4 + r)))
for r in range(4): I("v_add_f32 %s, 1.0, %s" % (V(Z + r), V(Z + r)))
for r in range(4): I("v_rcp_f32 %s, %s" % (V(Z + r), V(Z + r)))
for r in range(4): I("v_mul_f32 %s, %s, %s" % (V(Z + r), V(Z + r), V(Z + 4 + r)))
I("v_cvt_pk_bf16_f32 %s, %s, %s" % (V(Z), V(Z), V(Z + 1)))
I("v_cvt_pk_bf16_f32 %s, %s, %s" % (V(Z + 1), V(Z + 2), V(Z + 3)))
ex32(0x01010101)
I("ds_write_b64 %s, %s offset:%d" % (aHBw, V(Z, 2), HB))
ex(-1)
label("L_b7")
lgkm(0)
I("s_barrier")
stamp("B7")
br("s_branch L_OUT")
label("L_fin")
I("s_cmp_lg_u32 %s, 0" % sW)
br("s_cbranch_scc1 L_OUT")
I("s_cmp_ge_u32 s2, 32")
br("s_cbranch_scc1 L_OUT")
H = FR + 64
I("s_lshl_b32 %s, s2, 12" % sC); I("s_add_u32 %s, %s, 0x%x" % (sC, sC, WS_H3))
def ld_h3(tag):
    for u in range(4):
        I("buffer_load_dwordx4 %s, %s, %s, %s offen offset:%d sc1" % (V(H + 4*u, 4), vL16, WS, sC, 1024*u), tag=tag)
I("v_lshlrev_b32 %s, 16, %s" % (vX, vX))
gather("h3", ld_h3, check64([H, H + 4, H + 8, H + 12]))
for u in range(4):
    for p in range(2):
        I("v_lshlrev_b32 %s, 16, %s" % (V(Z + 4*u + 2*p), V(H + 4*u + 2 + p)))
        I("v_and_b32 %s, 0xffff0000, %s" % (V(Z + 4*u + 2*p + 1), V(H + 4*u + 2 + p)))
for r in range(4):
    I("v_add_f32 %s, %s, %s" % (V(Z + r), V(Z + r), V(Z + 4 + r)))
    I("v_add_f32 %s, %s, %s" % (V(Z + 8 + r), V(Z + 8 + r), V(Z + 12 + r)))
for r in range(4): I("v_add_f32 %s, %s, %s" % (V(Z + r), V(Z + r), V(Z + 8 + r)))
I("v_permlane16_swap_b32 %s, %s" % (V(Z), V(Z + 1)))
I("v_permlane16_swap_b32 %s, %s" % (V(Z + 2), V(Z + 3)))
I("v_add_f32 %s, %s, %s" % (V(Z), V(Z), V(Z + 1)))
I("v_add_f32 %s, %s, %s" % (V(Z + 2), V(Z + 2), V(Z + 3)))
I("v_permlane32_swap_b32 %s, %s" % (V(Z), V(Z + 2)))
I("v_add_f32 %s, %s, %s" % (V(Z), V(Z), V(Z + 2)))
I("v_add_f32_dpp %s, %s, %s row_ror:8%s" % (V(Z), V(Z), V(Z), DPP))
I("v_add_f32 %s, %s, %s" % (V(Z), V(Z), vX))
I("v_cvt_pk_bf16_f32 %s, %s, %s" % (V(Z), V(Z), V(Z)))
ex(mk8)
I("buffer_store_short %s, %s, %s, 0 offen" % (V(Z), oOut, OUT), tag="st")
I("s_cmp_lg_u32 s2, 0")
br("s_cbranch_scc1 L_OUT")
ex(1)
I("buffer_store_dword %s, %s, %s, 0 offen sc1" % (V(GR), vL16, WS), tag="st")
label("L_OUT")
DBL = os.environ["DBL"]; KK = knob("KK", 10)
ex(-1)
stamp("end")
flush(True)
I("s_load_dwordx2 s[4:5], s[0:1], 88")
I("s_mov_b32 s6, 256"); I("s_mov_b32 s7, 0x20000")
I("v_readlane_b32 %s, %s, 0" % (sA, vST))
I("v_readlane_b32 %s, %s, %d" % (sB, vST, names.index(DBL)))
I("s_not_b32 %s, %s" % (sA, sA))
I("v_mov_b32 %s, %s" % (vA, sA)); I("v_mov_b32 %s, %s" % (vB, sB)); I("v_mov_b32 %s, 0" % vC)
lgkm(0)
I("s_and_b32 %s, %s, 3" % (sA, sW)); I("s_cmp_lg_u32 %s, 0" % sA); I("s_cbranch_scc1 L_END")
ex(1)
I("buffer_atomic_umax %s, %s, s[4:7], 0 offen sc1" % (vA, vC))
I("buffer_atomic_umax %s, %s, s[4:7], 0 offen offset:128 sc1" % (vB, vC))
I("s_or_b32 %s, %s, s2" % (sA, sW)); I("s_cmp_lg_u32 %s, 0" % sA); I("s_cbranch_scc1 L_END")
def spin(reg, nm):
    I("s_memrealtime s[8:9]"); k.lgkm(0)
    k.label(nm)
    I("s_memrealtime s[10:11]"); k.lgkm(0)
    I("s_sub_u32 %s, s10, s8" % sB); I("s_cmp_lt_u32 %s, %s" % (sB, reg)); I("s_cbranch_scc1 %s" % nm)
I("s_movk_i32 %s, 1500" % sC)
spin(sC, "L_sp1")
I("buffer_load_dword %s, %s, s[4:7], 0 offen sc1" % (vA, vC))
I("buffer_load_dword %s, %s, s[4:7], 0 offen offset:128 sc1" % (vB, vC))
I("s_waitcnt vmcnt(0)")
I("v_readfirstlane_b32 %s, %s" % (sA, vA)); I("v_readfirstlane_b32 %s, %s" % (sC, vB))
I("s_not_b32 %s, %s" % (sA, sA)); I("s_sub_u32 %s, %s, %s" % (sC, sC, sA)); I("s_min_u32 %s, %s, 3000" % (sC, sC)); I("s_mul_i32 %s, %s, %d" % (sC, sC, KK))
spin(sC, "L_sp2")
k.label("L_END")
I("s_endpgm")
k.raw("L_CODE_END:")
k.raw('''.section .rodata,"a"
.p2align 6
.amdhsa_kernel %s
  .amdhsa_next_free_vgpr 256
  .amdhsa_next_free_sgpr 102
  .amdhsa_accum_offset 256
  .amdhsa_group_segment_fixed_size 0
  .amdhsa_kernarg_size 104
  .amdhsa_user_sgpr_count 2
  .amdhsa_user_sgpr_kernarg_segment_ptr 1
  .amdhsa_system_sgpr_workgroup_id_x 1
  .amdhsa_float_denorm_mode_32 3
.end_amdhsa_kernel''' % KN)
import subprocess, re
def addrs(lines):
    open("_g.s", "w").write("\n".join(lines) + "\n")
    subprocess.run(["clang", "-x", "assembler", "-target", "amdgcn-amd-amdhsa", "-mcpu=gfx950", "-c", "_g.s", "-o", "_g.o"], check=True)
    d = subprocess.run(["llvm-objdump", "-d", "--mcpu=gfx950", "_g.o"], capture_output=True, text=True).stdout
    return [int(m.group(1), 16) for m in re.finditer(r"// ([0-9A-F]{12}):", d)]
lines = k.text().split("\n")
if PF:
    NST = 8
    tmp = list(lines)
    e = tmp.index("L_CODE_END:")
    tmp[e:e] = ["L_stub_%d:" % i for i in range(NST)] + ["    s_endpgm"]
    ad = addrs(tmp)
    idx = [i for i, l in enumerate(lines) if l.startswith("    ") and not l.strip().startswith(";")]
    idx = idx[:k.count]
    first = ad[idx.index(lines.index("L_pc_end:") + 1)]
    start = (first // 1024 + 1) * 1024
    ins = []; shift = 0; nxt = start
    lim = lines.index("L_OUT:")
    for n, li in enumerate(idx):
        if li > lim: break
        if ad[n] + shift >= nxt and len(ins) < NST:
            ins.append(li); shift += 4; nxt += 1024
    assert len(ins) < NST
    for j in range(len(ins) - 1, -1, -1):
        tgt = "L_stub_%d" % (j + 4) if j + 4 < len(ins) else "L_back"
        lines[ins[j]:ins[j]] = ["L_stub_%d:" % j, "    s_cbranch_execz %s" % tgt]
    assert len(ins) >= 4
open(sys.argv[1], "w").write("\n".join(lines) + ("; STAMPS " + ",".join(names) + "\n" if STAMP else ""))
print("instructions:", k.count, "stamps:", len(names), "lds:", LDS_SIZE, "sgpr:", _s[0], file=sys.stderr)
```
